```python
import torch

def _softmax(x, axis=-1):
    return torch.softmax(x, dim=axis)
def _gelu(x):
    return torch.nn.functional.gelu(x, approximate="tanh")
def _silu(x):
    return torch.nn.functional.silu(x)
def _sigmoid(x):
    return torch.sigmoid(x)
def _layernorm(x, axis=-1, eps=1e-5):
    m = x.mean(dim=axis, keepdim=True)
    v = x.var(dim=axis, keepdim=True, unbiased=False)
    return (x - m) / torch.sqrt(v + eps)
def _scatter_add(tgt, idx, src, axis=0):
    return tgt.clone().index_add_(axis, idx, src)
def _segment_sum(src, seg, n):
    out = torch.zeros((n,) + src.shape[1:], dtype=src.dtype)
    return out.index_add_(0, seg, src)
def _pad(x, pw):
    flat = tuple(v for pair in reversed(pw) for v in pair)
    return torch.nn.functional.pad(x, flat)

kernel_name = 'recurrent_scan__gqa_block_cached__dense_activation_gelu__decode'

def setup_inputs():

    _w = (lambda a: (lambda t: t.to(torch.bfloat16) if t.is_floating_point() else t)(torch.as_tensor(a)))
    def _A_setup():
        B, Sq, D = 2, 1, 512
        Hq, Hkv, Sk, Dh = 32, 8, 32768, 128
        assert Hq % Hkv == 0, (Hq, Hkv)
        return {
            "x": _w((lambda *s: torch.randn(*s, dtype=torch.bfloat16) * 0.1)(B, Sq, D)),
            "k_cache": _w((lambda *s: torch.randn(*s, dtype=torch.bfloat16) * 0.8)(B, Hkv, Sk, Dh)),
            "v_cache": _w((lambda *s: torch.randn(*s, dtype=torch.bfloat16) * 3.2)(B, Hkv, Sk, Dh)),
            "wq": _w((lambda *s: torch.randn(*s, dtype=torch.bfloat16) * 0.8)(D, Hq * Dh) * (D ** -0.5)),
            "wo": _w((lambda *s: torch.randn(*s, dtype=torch.bfloat16) * 3.2)(Hq * Dh, D) * ((Hq * Dh) ** -0.5)),
        }
    _A_in = _A_setup()

    def _B_setup():
        B, S, D, F = 2, 1, 512, 1792
        return {
            "x": _w((lambda *s: torch.randn(*s, dtype=torch.bfloat16) * 0.1)(B, S, D)),
            "w1": _w((lambda *s: torch.randn(*s, dtype=torch.bfloat16) * 3.2)(D, F) * (D ** -0.5)),
            "b1": _w((lambda *s: torch.randn(*s, dtype=torch.bfloat16) * 3.2)(F) * 0.01),
            "w2": _w((lambda *s: torch.randn(*s, dtype=torch.bfloat16) * 3.2)(F, D) * (F ** -0.5)),
            "b2": _w((lambda *s: torch.randn(*s, dtype=torch.bfloat16) * 3.2)(D) * 0.01),
        }
    _B_in = _B_setup()

    return {
        "A_x": _A_in["x"],
        "A_k_cache": _A_in["k_cache"],
        "A_v_cache": _A_in["v_cache"],
        "A_wq": _A_in["wq"],
        "A_wo": _A_in["wo"],
        "B_x": _B_in["x"],
        "B_w1": _B_in["w1"],
        "B_b1": _B_in["b1"],
        "B_w2": _B_in["w2"],
        "B_b2": _B_in["b2"],
    }

def reference(A_x, A_k_cache, A_v_cache, A_wq, A_wo, B_x, B_w1, B_b1, B_w2, B_b2):
    def _A_ref(x, k_cache, v_cache, wq, wo):
        B, Sq, D = x.shape
        Hq, Dh = 32, 128
        Hkv = k_cache.shape[1]
        rep = Hq // Hkv
        q = (lambda x, *d: x.permute(*d))((x @ wq).reshape(B, Sq, Hq, Dh), 0, 2, 1, 3)
        k = (lambda x, n, axis: torch.repeat_interleave(x, n, dim=axis))(k_cache, rep, axis=1)
        v = (lambda x, n, axis: torch.repeat_interleave(x, n, dim=axis))(v_cache, rep, axis=1)
        scores = torch.einsum("bhqd,bhkd->bhqk", q, k) * (Dh ** -0.5)
        p = _softmax(scores, axis=-1)
        o = torch.einsum("bhqk,bhkd->bhqd", p, v)
        return (lambda x, *d: x.permute(*d))(o, 0, 2, 1, 3).reshape(B, Sq, Hq * Dh) @ wo

    def _B_ref(x, w1, b1, w2, b2):
        h = torch.einsum("bsd,df->bsf", x, w1) + b1
        h = _gelu(h)
        return torch.einsum("bsf,fd->bsd", h, w2) + b2

    x = A_x
    xn = _layernorm(x, axis=-1)
    s = _A_ref(xn, A_k_cache, A_v_cache, A_wq, A_wo)
    g = _silu(_B_ref(xn, B_w1, B_b1, B_w2, B_b2))
    return x + s * g
```

```python
import re
TRANS = ("v_exp_f32", "v_log_f32", "v_rcp_f32", "v_rsq_f32", "v_sqrt_f32", "v_sin_f32", "v_cos_f32", "v_rcp_iflag_f32")
def regs_of(tok):
    tok = tok.strip()
    neg = tok.startswith("-")
    if neg: tok = tok[1:]
    if tok.startswith("abs(") and tok.endswith(")"): tok = tok[4:-1]
    if tok.startswith("|") and tok.endswith("|"): tok = tok[1:-1]
    m = re.fullmatch(r"([vsa])(\d+)", tok)
    if m: return {(m.group(1), int(m.group(2)))}
    m = re.fullmatch(r"([vsa])\[(\d+):(\d+)\]", tok)
    if m: return {(m.group(1), i) for i in range(int(m.group(2)), int(m.group(3)) + 1)}
    if tok in ("vcc", "vcc_lo", "vcc_hi"): return {("x", "vcc")}
    if tok in ("exec", "exec_lo", "exec_hi"): return {("x", "exec")}
    if tok == "m0": return {("x", "m0")}
    return set()
class Ins:
    def __init__(self, text):
        self.text = text
        t = text.split(";")[0].strip()
        self.label = t.endswith(":")
        self.dir = t.startswith(".") or t == ""
        if self.label or self.dir:
            self.op = ""; self.w = set(); self.r = set(); self.cls = "none"; return
        parts = t.split(None, 1)
        self.op = parts[0]
        rest = parts[1] if len(parts) > 1 else ""
        ops = []; cur = ""; depth = 0
        for ch in rest:
            if ch == "[": depth += 1
            if ch == "]": depth -= 1
            if ch == "," and depth == 0: ops.append(cur.strip()); cur = ""
            else: cur += ch
        if cur.strip(): ops.append(cur.strip())
        mods = ""
        if ops:
            sp = ops[-1].split(None, 1)
            ops[-1] = sp[0]
            mods = sp[1] if len(sp) > 1 else ""
        self.ops = ops; self.mods = mods
        op = self.op
        R = [regs_of(o) for o in ops]
        allr = set().union(*R) if R else set()
        self.w = set(); self.r = set()
        self.dpp = ("row_" in mods) or ("quad_perm" in mods) or op.endswith("_dpp")
        self.trans = any(op.startswith(x) for x in TRANS)
        self.mfma = op.startswith("v_mfma")
        self.permlane = op.startswith("v_permlane")
        self.readlane = op.startswith("v_readlane") or op.startswith("v_readfirstlane")
        self.widestore = False; self.ldsdma = False
        if op.startswith("v_"):
            self.cls = "mfma" if self.mfma else "valu"
            if self.permlane:
                self.w = R[0] | R[1]; self.r = R[0] | R[1]
            elif op.startswith("v_cmp"):
                self.w = R[0]; self.r = set().union(*R[1:])
            else:
                self.w = R[0]; self.r = set().union(*R[1:]) if len(R) > 1 else set()
                if op.startswith("v_fmac") or op.startswith("v_dot2c") or op.startswith("v_writelane") or self.dpp or "op_sel" in mods:
                    self.r |= R[0]
                if op.startswith("v_add_co") or op.startswith("v_addc_co") or op.startswith("v_sub_co"):
                    self.w |= R[1]
            if self.mfma:
                self.srcA = R[1]; self.srcB = R[2]; self.srcC = R[3]
        elif op.startswith("ds_"):
            self.cls = "ds"
            if op.startswith("ds_read") or op.startswith("ds_bpermute") or op.startswith("ds_swizzle") or op.startswith("ds_permute"):
                self.w = R[0]; self.r = set().union(*R[1:]) if len(R) > 1 else set()
            else:
                self.r = allr
        elif op.startswith("buffer_") or op.startswith("global_"):
            self.cls = "vmem"
            self.ldsdma = " lds" in (" " + mods)
            if "load" in op and not self.ldsdma:
                self.w = R[0]; self.r = set().union(*R[1:])
            elif "atomic" in op and "sc0" in mods:
                self.w = R[0]; self.r = allr
            else:
                self.r = allr
                if "store" in op and ("x4" in op or "x3" in op): self.widestore = True; self.sdata = R[0] if op.startswith("buffer_") else R[1]
            if self.ldsdma: self.r |= {("x", "m0")}
        elif op.startswith("s_"):
            self.cls = "salu"
            if op.startswith("s_load") or op.startswith("s_memtime") or op.startswith("s_memrealtime") or op.startswith("s_buffer_load"):
                self.cls = "smem"; self.w = R[0]; self.r = set().union(*R[1:]) if len(R) > 1 else set()
            elif op.startswith("s_cmp") or op.startswith("s_cbranch") or op.startswith("s_branch") or op in ("s_waitcnt", "s_nop", "s_barrier", "s_sleep", "s_setprio", "s_endpgm"):
                self.r = allr
            else:
                self.w = R[0] if R else set(); self.r = set().union(*R[1:]) if len(R) > 1 else set()
                if "saveexec" in op: self.w |= {("x", "exec")}; self.r |= {("x", "exec")}
        else:
            raise ValueError("unknown instr " + text)
    def states(self):
        if self.label or self.dir: return 0
        if self.op == "s_nop": return int(self.ops[0], 0) + 1
        return 1
def need(p, c):
    n = 0
    vw = {x for x in p.w if x[0] in "va"}
    sw = {x for x in p.w if x[0] == "s" or x == ("x", "vcc")}
    if p.cls == "valu":
        if c.cls == "valu" and c.dpp and (vw & c.r): n = max(n, 2)
        if c.cls == "valu" and c.readlane and (vw & c.r): n = max(n, 1)
        if c.cls == "valu" and c.permlane and (vw & c.r): n = max(n, 2)
        if c.cls == "mfma" and (vw & c.r): n = max(n, 2)
        if p.trans and c.cls in ("valu", "mfma") and not getattr(c, "trans", False) and (vw & c.r): n = max(n, 1)
        if p.trans and c.cls in ("ds", "vmem") and (vw & c.r): n = max(n, 1)
        if sw:
            if c.cls == "valu" and (sw & c.r): n = max(n, 4 if c.readlane else 2)
            if c.cls == "vmem" and (sw & c.r): n = max(n, 5)
            if c.cls in ("salu", "smem") and (sw & c.r): n = max(n, 1 if c.cls == "salu" else 5)
    if p.cls == "valu" and p.op.startswith("v_dot"):
        if c.op == p.op:
            srcab = set()
            for o in c.ops[1:3]: srcab |= regs_of(o)
            if vw & srcab: n = max(n, 3)
        elif vw & (c.r | c.w): n = max(n, 3)
    if p.cls == "mfma":
        if c.cls == "mfma":
            if p.w & (c.srcA | c.srcB): n = max(n, 8)
            elif p.w & c.srcC and p.w != c.srcC: n = max(n, 6)
            elif (p.w & c.w) and p.w != c.srcC: n = max(n, 6)
        elif c.cls in ("valu", "ds", "vmem") and (p.w & (c.r | c.w)): n = max(n, 8)
        if c.cls == "valu" and (p.srcC & c.w): n = max(n, 3)
    if p.cls == "salu" and ("x", "m0") in p.w and c.cls == "vmem" and c.ldsdma: n = max(n, 1)
    if p.cls == "salu" and ("x", "exec") in p.w and c.cls == "valu" and c.dpp: n = max(n, 2)
    if p.cls == "salu" and ("x", "exec") in p.w and c.cls == "mfma": n = max(n, 4)
    if p.cls == "vmem" and p.widestore:
        if c.cls == "valu" and (p.sdata & c.w): n = max(n, 2)
        elif (p.sdata & c.w): n = max(n, 1)
    return n
class Asm:
    def __init__(self):
        self.L = []
    def __call__(self, text):
        for line in text.split("\n"):
            line = line.strip()
            if line == "": continue
            self.L.append(line)
    def finish(self, window=24):
        out = []
        added = 0
        for line in self.L:
            c = Ins(line)
            if c.label or c.dir:
                out.append(c); continue
            dist = 0; req = 0
            for p in reversed(out[-200:]):
                if p.label or p.dir: continue
                nd = need(p, c)
                if nd - dist > req: req = nd - dist
                dist += p.states()
                if dist >= window: break
            while req > 0:
                k = min(req, 16)
                out.append(Ins(f"s_nop {k-1}")); req -= k; added += 1
            out.append(c)
        txt = []
        for i in out:
            txt.append(i.text if (i.label or i.dir) else "  " + i.text)
        return "\n".join(txt) + "\n", added
```

```python
import sys, math
sys.path.insert(0, "gen")
from asmlib import Asm
NAME = "recurrent_scan__gqa_block_cached__dense_activation_gelu__decode"
WS_EPOCH = 0
WS_QG = 0x1000
WS_HG = 0x11000
WS_SG = 0x18000
WS_HB2 = 0x1C000
WS_MB1 = 0x40000
WS_DBG = 0x200000
WS_SIZE = 0x400000
L_WT = 131072
L_MISC = 147456
L_XN = L_MISC
L_QL = L_MISC + 2048
L_TG = L_MISC + 3072
L_ST = L_MISC + 3200
L_F = L_MISC + 3328
L_RED = L_MISC + 3392
L_G = L_MISC + 3456
LDS_SIZE = L_MISC + 4096
L_OP = L_WT
POLL_LIMIT = 30000
RING = 8

class Cfg:
    CAP = 2
    PRE = 2
    NT = " nt"
    DIAG = False
    DUMP = False
    WO_START = 2
    BAR3_AT = 27
    def __init__(self, **kw):
        for k, v in kw.items(): setattr(self, k, v)

def srd(a, dst, lo, hi, size, add=None):
    if add is None:
        a(f"s_mov_b32 s{dst}, s{lo}\ns_and_b32 s{dst+1}, s{hi}, 0xffff")
    else:
        a(f"s_add_u32 s{dst}, s{lo}, s{add}\ns_addc_u32 s{dst+1}, s{hi}, 0\ns_and_b32 s{dst+1}, s{dst+1}, 0xffff")
    a(f"s_mov_b32 s{dst+2}, 0x{size:x}\ns_mov_b32 s{dst+3}, 0x20000")

def stamp(a, cfg, idx, sreg_wave_slot, tmpv):
    if not cfg.DIAG: return 0
    a(f"s_memrealtime s[90:91]\ns_waitcnt lgkmcnt(0)")
    a(f"v_mov_b32 v{tmpv}, s90\nv_mov_b32 v{tmpv+1}, s{sreg_wave_slot}")
    a(f"s_mov_b64 s[92:93], exec\ns_mov_b64 exec, 1")
    a(f"buffer_store_dword v{tmpv}, v{tmpv+1}, s[44:47], 0 offen offset:{idx*4}")
    a(f"s_mov_b64 exec, s[92:93]")
    return 1

def allreduce_row(a, op, regs, tmp=None):
    for sh in (8, 4, 2, 1):
        for r in regs:
            a(f"{op}_dpp v{r}, v{r}, v{r} row_ror:{sh} row_mask:0xf bank_mask:0xf")
def allreduce_cross(a, op, regs, tmps):
    for sw in ("v_permlane16_swap_b32", "v_permlane32_swap_b32"):
        for r, t in zip(regs, tmps): a(f"v_mov_b32 v{t}, v{r}")
        for r, t in zip(regs, tmps): a(f"{sw} v{r}, v{t}")
        for r, t in zip(regs, tmps): a(f"{op} v{r}, v{r}, v{t}")
def reduce4(a, r0):
    a(f"v_permlane32_swap_b32 v{r0}, v{r0+1}\nv_permlane32_swap_b32 v{r0+2}, v{r0+3}")
    a(f"v_add_f32 v{r0}, v{r0}, v{r0+1}\nv_add_f32 v{r0+2}, v{r0+2}, v{r0+3}")
    a(f"v_permlane16_swap_b32 v{r0}, v{r0+2}")
    a(f"v_add_f32 v{r0}, v{r0}, v{r0+2}")
    allreduce_row(a, "v_add_f32", [r0])

class VM:
    def __init__(self, a): self.a = a; self.q = [];
    def issue(self, tag, n=1): self.q += [tag] * n
    def wait(self, tag):
        idx = [i for i, t in enumerate(self.q) if t == tag]
        if not idx: return
        last = idx[-1]
        n = len(self.q) - 1 - last
        assert n <= 63, n
        self.a(f"s_waitcnt vmcnt({n})")
        self.q = self.q[last + 1:]
    def waitall(self):
        self.a("s_waitcnt vmcnt(0)"); self.q = []

def poll(a, name, loads, tagregs, sT, acc, sleep, vm=None, cnt="s70"):
    a(f"s_mov_b32 {cnt}, {POLL_LIMIT}")
    a(f"s_nop 4")
    a(f"{name}:")
    for l in loads: a(l)
    a("s_waitcnt vmcnt(0)")
    first = True
    a(f"v_xor_b32 v{acc}, s{sT}, v{tagregs[0]}")
    for t in tagregs[1:]:
        a(f"v_xor_b32 v{acc+1}, s{sT}, v{t}")
        a(f"v_or_b32 v{acc}, v{acc}, v{acc+1}")
    a(f"v_cmp_ne_u32 vcc, 0, v{acc}")
    a(f"s_cbranch_vccz {name}_done")
    a(f"s_sub_u32 {cnt}, {cnt}, 1")
    a(f"s_cmp_eq_u32 {cnt}, 0")
    a(f"s_cbranch_scc1 {name}_done")
    if sleep: a(f"s_sleep {sleep}")
    a(f"s_branch {name}")
    a(f"{name}_done:")
    a("s_nop 4")
    if vm: vm.q = []

def gen_stream(a, cfg):
    SK, SV, SWO, SWS = 32, 36, 40, 44
    sWB, sOff, sT, sGrp, sSp, sC0, sBf, sDiag = 64, 65, 66, 67, 68, 69, 71, 72
    vL = 1
    vKD, vVD, vKR, vVR = 2, 6, 8, 12
    vWO = 20; TX = 21; T0 = 22
    QB = 32; WOR = 32; WOP = 64
    S = 96; P = 128
    AK = 144; BV = 144
    O = 208; AR = 240; F = 248
    vm = VM(a)
    a(f"""
    v_lshrrev_b32 v{T0}, 4, v{vL}
    v_and_b32 v{T0+1}, 15, v{vL}
    s_lshl_b32 s73, s3, 13
    s_lshl_b32 s{sWB}, s3, 15
    v_lshlrev_b32 v{T0+2}, 8, v{T0}
    v_add_u32 v{T0+2}, s73, v{T0+2}
    """)
    for n in range(4):
        a(f"v_add_u32 v{T0+3}, {4*n}, v{T0}\nv_xor_b32 v{T0+3}, v{T0+3}, v{T0+1}\nv_lshl_add_u32 v{vKD+n}, v{T0+3}, 4, v{T0+2}")
    a("s_waitcnt lgkmcnt(0)")
    a("s_lshl_b32 s74, s2, 19")
    srd(a, SK, 6, 7, 0x80000, add=74)
    srd(a, SV, 8, 9, 0x80000, add=74)
    srd(a, SWS, 28, 29, WS_SIZE)
    srd(a, SWO, 12, 13, 4096 * 1024)
    def issue(k):
        kk = k & 31
        so = (kk >> 1) * 32768 + (kk & 1) * 4096
        a(f"s_add_u32 m0, s{sWB}, {(k & 7) * 4096}")
        a(f"s_mov_b32 s{sOff}, {so}")
        for n in range(4):
            vo = (vKD + n) if k < 32 else (vVD + (n & 1))
            sr = SK if k < 32 else SV
            a(f"buffer_load_dwordx4 v{vo}, s[{sr}:{sr+3}], s{sOff} offen offset:{n*1024}{cfg.NT} lds")
        vm.issue(("slot", k), 4)
    p = 0
    issue(0); issue(1); p = 2
    for n in range(2):
        a(f"v_lshlrev_b32 v{T0+3}, 1, v{T0}\nv_add_u32 v{T0+3}, {8*n}, v{T0+3}\nv_xor_b32 v{T0+3}, v{T0+3}, v{T0+1}\nv_lshl_add_u32 v{vVD+n}, v{T0+3}, 4, v{T0+2}")
    a(f"v_lshlrev_b32 v{T0+4}, 8, v{T0+1}\nv_add_u32 v{T0+4}, s{sWB}, v{T0+4}")
    for j in range(4):
        a(f"v_add_u32 v{T0+3}, {4*j}, v{T0}\nv_xor_b32 v{T0+3}, v{T0+3}, v{T0+1}\nv_lshl_add_u32 v{vKR+j}, v{T0+3}, 4, v{T0+4}")
    a(f"""
    v_lshrrev_b32 v{T0+5}, 2, v{vL}
    v_lshlrev_b32 v{T0+4}, 8, v{T0+5}
    v_add_u32 v{T0+4}, s{sWB}, v{T0+4}
    v_and_b32 v{T0+6}, 1, v{vL}
    v_lshl_add_u32 v{T0+4}, v{T0+6}, 3, v{T0+4}
    v_and_b32 v{T0+5}, 7, v{T0+5}
    v_lshlrev_b32 v{T0+5}, 1, v{T0+5}
    v_bfe_u32 v{T0+6}, v{vL}, 1, 1
    """)
    for dg in range(8):
        a(f"v_add_u32 v{T0+3}, {2*dg}, v{T0+6}\nv_xor_b32 v{T0+3}, v{T0+3}, v{T0+5}\nv_lshl_add_u32 v{vVR+dg}, v{T0+3}, 4, v{T0+4}")
    a(f"""
    s_lshr_b32 s{sGrp}, s2, 4
    s_and_b32 s{sSp}, s2, 15
    s_and_b32 s75, s2, 7
    s_lshr_b32 s76, s2, 3
    s_lshr_b32 s{sBf}, s76, 4
    s_and_b32 s76, s76, 15
    s_lshl_b32 s75, s75, 6
    s_lshl_b32 s76, s76, 2
    s_add_u32 s{sC0}, s75, s76
    """)
    a(f"""
    v_lshrrev_b32 v{T0+3}, 7, v0
    v_and_b32 v{T0+4}, 127, v0
    v_lshl_add_u32 v{T0+3}, v{T0+3}, 9, v{T0+4}
    v_lshlrev_b32 v{T0+3}, 10, v{T0+3}
    s_lshl_b32 s75, s{sC0}, 1
    v_add_u32 v{vWO}, s75, v{T0+3}
    """)
    if cfg.DIAG:
        a(f"s_mul_i32 s{sDiag}, s2, 5\ns_add_u32 s{sDiag}, s{sDiag}, s3\ns_lshl_b32 s{sDiag}, s{sDiag}, 7\ns_add_u32 s{sDiag}, s{sDiag}, {WS_DBG}")
        n = stamp(a, cfg, 0, sDiag, T0 + 8); vm.issue("st", n)
    for r in range(QB, QB + 64): a(f"v_mov_b32 v{r}, 0")
    while p < RING:
        vm.wait(("slot", p - cfg.CAP)); issue(p); p += 1
    a("s_barrier")
    n = stamp(a, cfg, 1, sDiag, T0 + 8); vm.issue("st", n)
    a(f"""
    v_and_b32 v{T0+3}, 3, v{vL}
    v_lshlrev_b32 v{T0+3}, 8, v{T0+3}
    v_lshl_add_u32 v{T0+3}, v{T0}, 4, v{T0+3}
    v_add_u32 v{T0+3}, {L_QL}, v{T0+3}
    v_mov_b32 v{T0+4}, {L_TG}
    ds_read_b32 v{T0+5}, v{T0+4}
    """)
    for t in range(4):
        m = 0x000F000F << (4 * t)
        a(f"s_mov_b32 exec_lo, 0x{m:x}\ns_mov_b32 exec_hi, 0x{m:x}")
        for j in range(4):
            r = QB + (t * 4 + j) * 4
            a(f"ds_read_b128 v[{r}:{r+3}], v{T0+3} offset:{j*64}")
        if t == 1: a("s_waitcnt lgkmcnt(4)")
    a("s_mov_b64 exec, -1")
    a("s_waitcnt lgkmcnt(0)")
    a(f"v_readfirstlane_b32 s{sT}, v{T0+5}")
    wo_done = 0
    def wo_load(idx):
        i, h = idx >> 2, idx & 3
        r = WOR + idx * 2
        a(f"s_mov_b32 s77, 0x{i * (1 << 20) + h * 131072:x}")
        a(f"buffer_load_dwordx2 v[{r}:{r+1}], v{vWO}, s[{SWO}:{SWO+3}], s77 offen")
        vm.issue(("wo", idx))
    def consume_k(u):
        m, blk = u >> 1, u & 1
        pi, t = m >> 2, m & 3
        D = S + (2 * pi + blk) * 4
        A = AK + (u & 1) * 16
        for j in range(4):
            a(f"ds_read_b128 v[{A+4*j}:{A+4*j+3}], v{vKR+j} offset:{(u & 7) * 4096}")
        for j in range(4):
            a(f"s_waitcnt lgkmcnt({3-j})")
            B = QB + (t * 4 + j) * 4
            C = "0" if (t == 0 and j == 0) else f"v[{D}:{D+3}]"
            a(f"v_mfma_f32_16x16x32_bf16 v[{D}:{D+3}], v[{A+4*j}:{A+4*j+3}], v[{B}:{B+3}], {C}")
    def softmax():
        c = (128 ** -0.5) * math.log2(math.e)
        import struct
        cb = struct.unpack("<I", struct.pack("<f", c))[0]
        mx, t1, t2 = T0 + 3, T0 + 4, T0 + 5
        a(f"s_mov_b32 s78, 0x{cb:x}")
        a(f"v_max3_f32 v{mx}, v{S}, v{S+1}, v{S+2}")
        for r in range(S + 3, S + 31, 2):
            a(f"v_max3_f32 v{mx}, v{mx}, v{r}, v{r+1}")
        a(f"v_max_f32 v{mx}, v{mx}, v{S+31}")
        for sh in (4, 8):
            a(f"v_max_f32_dpp v{mx}, v{mx}, v{mx} row_ror:{sh} row_mask:0xf bank_mask:0xf")
        allreduce_cross(a, "v_max_f32", [mx], [t1])
        a(f"v_mul_f32 v{mx}, s78, v{mx}")
        for r in range(S, S + 32):
            a(f"v_fma_f32 v{r}, v{r}, s78, -v{mx}")
        for r in range(S, S + 32):
            a(f"v_exp_f32 v{r}, v{r}")
        ls = [T0 + 5, T0 + 6, T0 + 7, T0 + 8]
        for q in range(4):
            a(f"v_add_f32 v{ls[q]}, v{S+q}, v{S+4+q}")
        for r in range(S + 8, S + 32):
            a(f"v_add_f32 v{ls[r & 3]}, v{ls[r & 3]}, v{r}")
        for q in range(16):
            a(f"v_cvt_pk_bf16_f32 v{P+q}, v{S+2*q}, v{S+2*q+1}")
        a(f"v_add_f32 v{ls[0]}, v{ls[0]}, v{ls[1]}\nv_add_f32 v{ls[2]}, v{ls[2]}, v{ls[3]}\nv_add_f32 v{ls[0]}, v{ls[0]}, v{ls[2]}")
        for sh in (4, 8):
            a(f"v_add_f32_dpp v{ls[0]}, v{ls[0]}, v{ls[0]} row_ror:{sh} row_mask:0xf bank_mask:0xf")
        allreduce_cross(a, "v_add_f32", [ls[0]], [t1])
        a(f"""
        v_mov_b32 v{T0+8}, v{mx}
        v_mov_b32 v{T0+9}, v{ls[0]}
        s_lshl_b32 s79, s3, 5
        s_add_u32 s79, s79, {L_ST}
        v_lshlrev_b32 v{TX}, 3, v{vL}
        v_add_u32 v{TX}, s79, v{TX}
        s_mov_b64 exec, 15
        ds_write_b64 v{TX}, v[{T0+8}:{T0+9}]
        s_mov_b64 exec, -1
        s_waitcnt lgkmcnt(0)
        s_barrier
        """)
        assert (T0 + 8) % 2 == 0 or True
    def consume_v(k):
        kk = k - 32
        m, blk = kk >> 1, kk & 1
        pi, t = m >> 2, m & 3
        B = BV + (m & 1) * 32
        ar = AR + (m & 1) * 4
        for dg in range(8):
            r = B + dg * 4 + blk * 2
            a(f"ds_read_b64_tr_b16 v[{r}:{r+1}], v{vVR+dg} offset:{(k & 7) * 4096}")
        if blk == 0:
            if t > 0:
                for q in range(4):
                    a(f"v_mov_b32_dpp v{ar+q}, v{P+4*pi+q} row_shl:{4*t} row_mask:0xf bank_mask:0xf bound_ctrl:0")
        else:
            Aop = ar if t > 0 else P + 4 * pi
            for dg in range(8):
                a(f"s_waitcnt lgkmcnt({7-dg})")
                C = "0" if m == 0 else f"v[{O+4*dg}:{O+4*dg+3}]"
                a(f"v_mfma_f32_16x16x32_bf16 v[{O+4*dg}:{O+4*dg+3}], v[{Aop}:{Aop+3}], v[{B+4*dg}:{B+4*dg+3}], {C}")
    c = 0
    TOTAL = 64
    while c < TOTAL:
        if c == 32:
            ex = 0
            while ex < cfg.PRE and p < TOTAL and p - RING <= c - 1:
                issue(p); p += 1; ex += 1
            n = stamp(a, cfg, 2, sDiag, T0 + 8); vm.issue("st", n)
            a("s_nop 7")
            softmax()
            n = stamp(a, cfg, 3, sDiag, T0 + 8); vm.issue("st", n)
        backlog = p - c
        vm.wait(("slot", c))
        if p < TOTAL and p - RING <= c - 1 and (backlog <= cfg.CAP or (c & 1 and backlog <= RING)):
            if backlog > cfg.CAP or True:
                vm.wait(("slot", p - cfg.CAP))
            issue(p); p += 1
        if c >= 32 + cfg.WO_START and wo_done < 16:
            wo_load(wo_done); wo_done += 1
        if c == 32 + cfg.BAR3_AT:
            a("s_barrier")
            a(f"s_lshl_b32 s79, s3, 4\ns_add_u32 s79, s79, {L_F}\nv_mov_b32 v{T0+3}, s79\nds_read_b128 v[{F}:{F+3}], v{T0+3}")
            assert wo_done == 16
            vm.wait(("wo", 15))
            a("s_mov_b32 s80, 0x05040100\ns_mov_b32 s81, 0x07060302")
            for i in range(4):
                for hp in range(2):
                    A_ = WOR + (i * 4 + 2 * hp) * 2; B_ = A_ + 2
                    o = WOP + (i * 2 + hp) * 4
                    a(f"v_perm_b32 v{o}, v{B_}, v{A_}, s80\nv_perm_b32 v{o+1}, v{B_}, v{A_}, s81")
                    a(f"v_perm_b32 v{o+2}, v{B_+1}, v{A_+1}, s80\nv_perm_b32 v{o+3}, v{B_+1}, v{A_+1}, s81")
            a("s_waitcnt lgkmcnt(0)")
        if c < 32: consume_k(c)
        else: consume_v(c)
        c += 1
    n = stamp(a, cfg, 4, sDiag, T0 + 8); vm.issue("st", n)
    a(f"""
    v_lshlrev_b32 v{T0+3}, 4, v{vL}
    s_lshl_b32 s79, s3, 11
    s_add_u32 s79, s79, {L_OP}
    v_add_u32 v{T0+3}, s79, v{T0+3}
    v_lshlrev_b32 v{T0+4}, 3, v0
    v_add_u32 v{T0+4}, {L_OP}, v{T0+4}
    """)
    a(f"""
    s_lshl_b32 s79, s{sGrp}, 16
    s_lshl_b32 s82, s{sSp}, 8
    s_add_u32 s79, s79, s82
    s_add_u32 s79, s79, {WS_MB1}
    v_lshrrev_b32 v{T0+5}, 4, v0
    v_lshlrev_b32 v{T0+5}, 12, v{T0+5}
    v_and_b32 v{T0+6}, 15, v0
    v_lshl_add_u32 v{T0+5}, v{T0+6}, 4, v{T0+5}
    v_add_u32 v{T0+5}, s79, v{T0+5}
    s_lshl_b32 s79, s{sBf}, 14
    s_add_u32 s79, s79, {WS_HB2}
    v_lshlrev_b32 v{T0+6}, 4, v0
    v_add_u32 v{T0+6}, s79, v{T0+6}
    """)
    a("s_mov_b64 exec, 0xffff")
    for dg in range(8):
        for r in range(4):
            a(f"v_mul_f32 v{O+4*dg+r}, v{O+4*dg+r}, v{F+r}")
        a(f"ds_write_b128 v{T0+3}, v[{O+4*dg}:{O+4*dg+3}] offset:{dg*256}")
    a("s_mov_b64 exec, -1\ns_waitcnt lgkmcnt(0)\ns_barrier")
    R = 144
    for w in range(4):
        a(f"ds_read_b64 v[{R+2*w}:{R+2*w+1}], v{T0+4} offset:{w*2048}")
    a("s_waitcnt lgkmcnt(2)")
    a(f"v_add_f32 v{R}, v{R}, v{R+2}\nv_add_f32 v{R+1}, v{R+1}, v{R+3}")
    a("s_waitcnt lgkmcnt(0)")
    a(f"v_add_f32 v{R+4}, v{R+4}, v{R+6}\nv_add_f32 v{R+5}, v{R+5}, v{R+7}")
    a(f"v_add_f32 v{R+8}, v{R}, v{R+4}\nv_mov_b32 v{R+9}, s{sT}\nv_add_f32 v{R+10}, v{R+1}, v{R+5}\nv_mov_b32 v{R+11}, s{sT}")
    a(f"buffer_store_dwordx4 v[{R+8}:{R+11}], v{T0+5}, s[{SWS}:{SWS+3}], 0 offen sc1")
    n = stamp(a, cfg, 5, sDiag, T0 + 8)
    D2 = 160
    loads = [f"buffer_load_dwordx4 v[{D2+4*i}:{D2+4*i+3}], v{T0+6}, s[{SWS}:{SWS+3}], s{83+i} offen sc1" for i in range(4)]
    for i in range(4): a(f"s_mov_b32 s{83+i}, {i*4096}")
    poll(a, "L_poll_h2", loads, [D2 + 4 * i + q for i in range(4) for q in (1, 3)], sT, T0 + 7, 1, vm)
    n = stamp(a, cfg, 6, sDiag, T0 + 8)
    ACC = 176
    for i in range(4):
        for hp in range(2):
            for cc in range(4):
                w_ = WOP + (i * 2 + hp) * 4 + cc
                o_ = D2 + 4 * i + 2 * hp
                if i == 0 and hp == 0:
                    a(f"v_dot2_f32_bf16 v{ACC+cc}, v{o_}, v{w_}, 0")
                else:
                    a(f"v_dot2_f32_bf16 v{ACC+cc}, v{o_}, v{w_}, v{ACC+cc}")
    reduce4(a, ACC)
    a(f"""
    v_lshrrev_b32 v{T0+3}, 5, v{vL}
    v_bfe_u32 v{T0+4}, v{vL}, 4, 1
    v_lshl_add_u32 v{T0+3}, v{T0+4}, 1, v{T0+3}
    v_lshlrev_b32 v{T0+3}, 2, v{T0+3}
    s_lshl_b32 s79, s3, 4
    s_add_u32 s79, s79, {L_RED}
    v_add_u32 v{T0+3}, s79, v{T0+3}
    s_mov_b32 exec_lo, 0x00010001
    s_mov_b32 exec_hi, 0x00010001
    ds_write_b32 v{T0+3}, v{ACC}
    s_mov_b64 exec, -1
    s_waitcnt lgkmcnt(0)
    s_barrier
    """)
    n = stamp(a, cfg, 7, sDiag, T0 + 8)
    if cfg.DIAG: a("s_waitcnt vmcnt(0)")
    a("s_endpgm")

def gen_helper(a, cfg):
    SX, SWQ, SW1, SB1, SW2, SB2, SOUT, SWS = 32, 36, 40, 48, 52, 56, 60, 44
    sT, sGrp, sSp, sC0, sBf, sDiag = 66, 67, 68, 69, 71, 72
    sXc, sI = 73, 74
    vL = 1
    vm = VM(a)
    XA = 64
    T0 = 2
    a("s_setprio 3")
    a("s_waitcnt lgkmcnt(0)")
    srd(a, SX, 4, 5, 2048)
    srd(a, SWQ, 10, 11, 512 * 8192)
    srd(a, SWS, 28, 29, WS_SIZE)
    a(f"s_load_dword s{sT}, s[28:29], {WS_EPOCH}")
    X = 8
    a(f"v_lshlrev_b32 v2, 4, v{vL}")
    a(f"buffer_load_dwordx4 v[{X}:{X+3}], v2, s[{SX}:{SX+3}], 0 offen")
    a(f"buffer_load_dwordx4 v[{X+4}:{X+7}], v2, s[{SX}:{SX+3}], 0 offen offset:1024")
    vm.issue("x", 2)
    a(f"""
    s_and_b32 s{sXc}, s2, 7
    s_lshr_b32 s{sI}, s2, 3
    s_lshr_b32 s75, s{sI}, 2
    s_lshl_b32 s75, s75, 3
    s_add_u32 s75, s75, s{sXc}
    s_lshl_b32 s75, s75, 6
    s_and_b32 s76, s{sI}, 3
    s_lshl_b32 s76, s76, 4
    s_add_u32 s75, s75, s76
    """)
    a(f"""
    v_lshrrev_b32 v3, 1, v{vL}
    v_and_b32 v4, 1, v{vL}
    v_lshlrev_b32 v4, 4, v4
    v_lshl_add_u32 v5, v3, 13, v4
    s_lshl_b32 s76, s75, 1
    v_add_u32 v5, s76, v5
    """)
    for n in range(16):
        a(f"s_mov_b32 m0, {L_WT + n*1024}\ns_mov_b32 s77, {n*32*8192}")
        a(f"buffer_load_dwordx4 v5, s[{SWQ}:{SWQ+3}], s77 offen lds")
    vm.issue("wq", 16)
    srd(a, SW1, 16, 17, 512 * 3584)
    srd(a, SB1, 18, 19, 3584)
    srd(a, SW2, 20, 21, 1792 * 1024)
    srd(a, SB2, 22, 23, 1024)
    srd(a, SOUT, 24, 25, 2048)
    a(f"""
    s_lshr_b32 s{sGrp}, s2, 4
    s_and_b32 s{sSp}, s2, 15
    s_lshr_b32 s{sBf}, s{sI}, 4
    s_and_b32 s76, s{sI}, 15
    s_lshl_b32 s76, s76, 2
    s_lshl_b32 s{sC0}, s{sXc}, 6
    s_add_u32 s{sC0}, s{sC0}, s76
    """)
    if cfg.DIAG:
        a(f"s_mul_i32 s{sDiag}, s2, 5\ns_add_u32 s{sDiag}, s{sDiag}, 4\ns_lshl_b32 s{sDiag}, s{sDiag}, 7\ns_add_u32 s{sDiag}, s{sDiag}, {WS_DBG}")
        n = stamp(a, cfg, 0, sDiag, 6); vm.issue("st", n)
    Fx = 16
    vm.wait("x")
    for b in range(2):
        for e in range(4):
            a(f"v_lshlrev_b32 v{Fx+8*b+2*e}, 16, v{X+4*b+e}\nv_and_b32 v{Fx+8*b+2*e+1}, 0xffff0000, v{X+4*b+e}")
    s0, s1, t0, t1 = 32, 33, 34, 35
    def sum8(dst, base):
        a(f"v_add_f32 v{dst}, v{base}, v{base+1}")
        for e in range(2, 8): a(f"v_add_f32 v{dst}, v{dst}, v{base+e}")
    sum8(s0, Fx); sum8(s1, Fx + 8)
    allreduce_row(a, "v_add_f32", [s0, s1]); allreduce_cross(a, "v_add_f32", [s0, s1], [t0, t1])
    a(f"v_mul_f32 v{s0}, 0x3b000000, v{s0}\nv_mul_f32 v{s1}, 0x3b000000, v{s1}")
    Dv = 36
    q0, q1 = 52, 53
    for b in range(2):
        for e in range(8):
            a(f"v_sub_f32 v{Dv+8*b+e}, v{Fx+8*b+e}, v{s0+b}")
    for b in range(2):
        a(f"v_mul_f32 v{q0+b}, v{Dv+8*b}, v{Dv+8*b}")
        for e in range(1, 8): a(f"v_fmac_f32 v{q0+b}, v{Dv+8*b+e}, v{Dv+8*b+e}")
    allreduce_row(a, "v_add_f32", [q0, q1]); allreduce_cross(a, "v_add_f32", [q0, q1], [t0, t1])
    a(f"v_mul_f32 v{q0}, 0x3b000000, v{q0}\nv_mul_f32 v{q1}, 0x3b000000, v{q1}")
    a(f"""
    v_cvt_pk_bf16_f32 v54, v{s0}, v{s1}
    v_cvt_pk_bf16_f32 v55, v{q0}, v{q1}
    v_lshlrev_b32 v{s0}, 16, v54
    v_and_b32 v{s1}, 0xffff0000, v54
    v_lshlrev_b32 v{q0}, 16, v55
    v_and_b32 v{q1}, 0xffff0000, v55
    v_add_f32 v{q0}, 0x3727c5ac, v{q0}
    v_add_f32 v{q1}, 0x3727c5ac, v{q1}
    v_cvt_pk_bf16_f32 v55, v{q0}, v{q1}
    v_lshlrev_b32 v{q0}, 16, v55
    v_and_b32 v{q1}, 0xffff0000, v55
    v_sqrt_f32 v{q0}, v{q0}
    v_sqrt_f32 v{q1}, v{q1}
    v_cvt_pk_bf16_f32 v55, v{q0}, v{q1}
    v_lshlrev_b32 v{q0}, 16, v55
    v_and_b32 v{q1}, 0xffff0000, v55
    v_rcp_f32 v56, v{q0}
    v_rcp_f32 v57, v{q1}
    """)
    for b in range(2):
        for e in range(0, 8, 2):
            r = Fx + 8 * b + e
            a(f"v_sub_f32 v{r}, v{r}, v{s0+b}\nv_sub_f32 v{r+1}, v{r+1}, v{s0+b}")
            a(f"v_cvt_pk_bf16_f32 v58, v{r}, v{r+1}")
            a(f"v_lshlrev_b32 v{r}, 16, v58\nv_and_b32 v{r+1}, 0xffff0000, v58")
            for rr in (r, r + 1):
                a(f"v_mul_f32 v59, v{rr}, v{56+b}\nv_fma_f32 v60, -v59, v{q0+b}, v{rr}\nv_fma_f32 v{rr}, v60, v{56+b}, v59")
            a(f"v_cvt_pk_bf16_f32 v{X+4*b+e//2}, v{r}, v{r+1}")
    a(f"v_lshlrev_b32 v2, 4, v{vL}\nv_add_u32 v2, {L_XN}, v2")
    a(f"ds_write_b128 v2, v[{X}:{X+3}]\nds_write_b128 v2, v[{X+4}:{X+7}] offset:1024")
    a(f"""
    v_and_b32 v3, 1, v{vL}
    v_lshlrev_b32 v3, 10, v3
    v_lshrrev_b32 v4, 4, v{vL}
    v_lshl_add_u32 v3, v4, 3, v3
    v_add_u32 v3, {L_XN}, v3
    s_waitcnt lgkmcnt(0)
    """)
    for T in range(16):
        a(f"ds_read2_b64 v[{XA+4*T}:{XA+4*T+3}], v3 offset0:{T*8} offset1:{T*8+4}")
        if T == 7: a("s_waitcnt lgkmcnt(0)")
    a("s_waitcnt lgkmcnt(0)")
    a(f"s_mul_i32 s{sT}, s{sT}, 0x9E3779B1\ns_add_u32 s{sT}, s{sT}, 0x7F4A7C15")
    n = stamp(a, cfg, 1, sDiag, 6); vm.issue("st", n)
    BT = 128
    def tile_gemv():
        a(f"v_lshlrev_b32 v2, 3, v{vL}\nv_add_u32 v2, {L_WT}, v2")
        def rd(T):
            B = BT + 4 * T
            a(f"ds_read_b64_tr_b16 v[{B}:{B+1}], v2 offset:{T*1024}\nds_read_b64_tr_b16 v[{B+2}:{B+3}], v2 offset:{T*1024+512}")
        for T in range(7): rd(T)
        for T in range(16):
            B = BT + 4 * T
            a(f"s_waitcnt lgkmcnt({2 * (min(T + 6, 15) - T)})")
            C = "0" if T == 0 else "v[4:7]"
            a(f"v_mfma_f32_16x16x32_bf16 v[4:7], v[{XA+4*T}:{XA+4*T+3}], v[{B}:{B+3}], {C}")
            if T + 7 < 16: rd(T + 7)
    vm.wait("wq")
    tile_gemv()
    a(f"""
    v_add_u32 v8, s75, v{vL}
    v_lshlrev_b32 v8, 3, v8
    v_add_u32 v8, {WS_QG}, v8
    v_mov_b32 v11, s{sT}
    v_mov_b32 v13, s{sT}
    v_cvt_pk_bf16_f32 v10, v4, v4
    v_cvt_pk_bf16_f32 v12, v5, v5
    s_mov_b32 s77, {4096*8}
    s_mov_b64 exec, 0xffff
    buffer_store_dwordx2 v[10:11], v8, s[{SWS}:{SWS+3}], 0 offen sc1
    buffer_store_dwordx2 v[12:13], v8, s[{SWS}:{SWS+3}], s77 offen sc1
    s_mov_b64 exec, -1
    """)
    vm.issue("qst", 2)
    n = stamp(a, cfg, 2, sDiag, 6); vm.issue("st", n)
    a(f"""
    s_lshl_b32 s76, s{sGrp}, 12
    s_add_u32 s76, s76, {WS_QG}
    v_lshlrev_b32 v8, 4, v{vL}
    v_add_u32 v8, s76, v8
    """)
    QD = 16
    loads = [f"buffer_load_dwordx4 v[{QD+4*i}:{QD+4*i+3}], v8, s[{SWS}:{SWS+3}], 0 offen offset:{i*1024} sc1" for i in range(4)]
    poll(a, "L_poll_q", loads, [QD + 4 * i + q for i in range(4) for q in (1, 3)], sT, 32, 1, vm)
    a(f"s_mov_b32 s80, 0x05040100\nv_lshlrev_b32 v9, 2, v{vL}\nv_add_u32 v9, {L_QL}, v9")
    for i in range(4):
        a(f"v_perm_b32 v{QD+4*i}, v{QD+4*i+2}, v{QD+4*i}, s80")
        a(f"ds_write_b32 v9, v{QD+4*i} offset:{i*256}")
    a(f"v_mov_b32 v10, {L_TG}\nv_mov_b32 v11, s{sT}\nds_write_b32 v10, v11")
    a("s_waitcnt lgkmcnt(0)\ns_barrier")
    n = stamp(a, cfg, 3, sDiag, 6); vm.issue("st", n)
    a(f"s_cmp_ge_u32 s{sI}, 16\ns_cbranch_scc1 L_no_h\ns_cmp_ge_u32 s75, 1792\ns_cbranch_scc1 L_no_h")
    a(f"""
    v_lshrrev_b32 v3, 1, v{vL}
    v_and_b32 v4, 1, v{vL}
    v_lshlrev_b32 v4, 4, v4
    v_mul_u32_u24 v5, 3584, v3
    v_add_u32 v5, v5, v4
    s_lshl_b32 s76, s75, 1
    v_add_u32 v5, s76, v5
    """)
    for n in range(16):
        a(f"s_mov_b32 m0, {L_WT + n*1024}\ns_mov_b32 s77, {n*32*3584}")
        a(f"buffer_load_dwordx4 v5, s[{SW1}:{SW1+3}], s77 offen lds")
    a(f"""
    v_add_u32 v8, s75, v{vL}
    v_lshlrev_b32 v9, 1, v8
    buffer_load_ushort v14, v9, s[{SB1}:{SB1+3}], 0 offen
    v_lshlrev_b32 v8, 3, v8
    v_add_u32 v8, {WS_HG}, v8
    s_waitcnt vmcnt(0)
    """)
    tile_gemv()
    a("v_lshlrev_b32 v14, 16, v14")
    a(f"""
    v_cvt_pk_bf16_f32 v10, v4, v5
    v_lshlrev_b32 v4, 16, v10
    v_and_b32 v5, 0xffff0000, v10
    v_add_f32 v4, v4, v14
    v_add_f32 v5, v5, v14
    v_cvt_pk_bf16_f32 v10, v4, v5
    v_lshlrev_b32 v4, 16, v10
    v_and_b32 v5, 0xffff0000, v10
    """)
    import struct
    def fb(x): return struct.unpack("<I", struct.pack("<f", x))[0]
    k = 2 * math.sqrt(2 / math.pi) * math.log2(math.e)
    a(f"s_mov_b32 s78, 0x{fb(0.044715):x}\ns_mov_b32 s79, 0x{fb(-k):x}")
    for r in (4, 5):
        t = 16 + (r - 4) * 2
        a(f"v_mul_f32 v{t}, v{r}, v{r}\nv_fma_f32 v{t}, v{t}, s78, 1.0\nv_mul_f32 v{t}, v{t}, v{r}\nv_mul_f32 v{t}, s79, v{t}")
        a(f"v_exp_f32 v{t}, v{t}\nv_add_f32 v{t}, 1.0, v{t}\nv_rcp_f32 v{t}, v{t}\nv_mul_f32 v{r}, v{r}, v{t}")
    a(f"""
    v_mov_b32 v11, s{sT}
    v_mov_b32 v13, s{sT}
    v_cvt_pk_bf16_f32 v10, v4, v4
    v_cvt_pk_bf16_f32 v12, v5, v5
    s_mov_b32 s77, {1792*8}
    s_mov_b64 exec, 0xffff
    buffer_store_dwordx2 v[10:11], v8, s[{SWS}:{SWS+3}], 0 offen sc1
    buffer_store_dwordx2 v[12:13], v8, s[{SWS}:{SWS+3}], s77 offen sc1
    s_mov_b64 exec, -1
    """)
    a("L_no_h:")
    a("s_nop 4")
    vm.q = []
    W2 = 64
    W2P = 128
    HD = 184
    a(f"""
    v_lshlrev_b32 v8, 11, v{vL}
    s_lshl_b32 s76, s{sC0}, 1
    v_add_u32 v8, s76, v8
    """)
    for i in range(14):
        for e in range(2):
            r = W2 + (i * 2 + e) * 2
            a(f"s_mov_b32 s77, {i*64*2048 + e*1024}")
            a(f"buffer_load_dwordx2 v[{r}:{r+1}], v8, s[{SW2}:{SW2+3}], s77 offen")
    a(f"""
    v_add_u32 v9, s{sC0}, v{vL}
    v_lshlrev_b32 v9, 1, v9
    buffer_load_ushort v20, v9, s[{SB2}:{SB2+3}], 0 offen
    s_lshl_b32 s76, s{sBf}, 10
    v_add_u32 v21, s76, v9
    buffer_load_ushort v22, v21, s[{SX}:{SX+3}], 0 offen
    buffer_load_ushort v23, v21, s[{SOUT}:{SOUT+3}], 0 offen
    s_waitcnt vmcnt(0)
    s_mov_b32 s80, 0x05040100
    s_mov_b32 s81, 0x07060302
    """)
    for i in range(14):
        A_ = W2 + i * 4; B_ = A_ + 2; o = W2P + i * 4
        a(f"v_perm_b32 v{o}, v{B_}, v{A_}, s80\nv_perm_b32 v{o+1}, v{B_}, v{A_}, s81")
        a(f"v_perm_b32 v{o+2}, v{B_+1}, v{A_+1}, s80\nv_perm_b32 v{o+3}, v{B_+1}, v{A_+1}, s81")
    a(f"""
    s_mul_i32 s76, s{sBf}, {1792*8}
    s_add_u32 s76, s76, {WS_HG}
    v_lshlrev_b32 v8, 4, v{vL}
    v_add_u32 v8, s76, v8
    """)
    for i in range(14): pass
    loads = []
    for i in range(14):
        if i % 4 == 0 and i > 0: loads.append(f"s_mov_b32 s77, {i*1024}")
        so = "0" if i < 4 else "s77"
        loads.append(f"buffer_load_dwordx4 v[{HD+4*i}:{HD+4*i+3}], v8, s[{SWS}:{SWS+3}], {so} offen offset:{(i%4)*1024} sc1")
    poll(a, "L_poll_h", loads, [HD + 4 * i + q for i in range(14) for q in (1, 3)], sT, 32, 8, vm)
    ACC = 24
    for i in range(14):
        a(f"v_perm_b32 v{HD+4*i}, v{HD+4*i+2}, v{HD+4*i}, s80")
    for i in range(14):
        for cc in range(4):
            if i == 0: a(f"v_dot2_f32_bf16 v{ACC+cc}, v{HD}, v{W2P+cc}, 0")
            else: a(f"v_dot2_f32_bf16 v{ACC+cc}, v{HD+4*i}, v{W2P+4*i+cc}, v{ACC+cc}")
    reduce4(a, ACC)
    a(f"""
    v_lshrrev_b32 v3, 5, v{vL}
    v_bfe_u32 v4, v{vL}, 4, 1
    v_lshl_add_u32 v3, v4, 1, v3
    v_lshlrev_b32 v3, 2, v3
    v_add_u32 v3, {L_G}, v3
    s_mov_b32 exec_lo, 0x00010001
    s_mov_b32 exec_hi, 0x00010001
    ds_write_b32 v3, v{ACC}
    s_mov_b64 exec, -1
    v_lshlrev_b32 v3, 2, v{vL}
    v_and_b32 v3, 15, v3
    v_add_u32 v3, {L_G}, v3
    s_waitcnt lgkmcnt(0)
    ds_read_b32 v4, v3
    s_waitcnt lgkmcnt(0)
    """)
    a(f"""
    v_lshlrev_b32 v20, 16, v20
    v_cvt_pk_bf16_f32 v4, v4, v4
    v_lshlrev_b32 v4, 16, v4
    v_add_f32 v4, v4, v20
    v_cvt_pk_bf16_f32 v4, v4, v4
    v_lshlrev_b32 v4, 16, v4
    v_mul_f32 v5, 0x{fb(-math.log2(math.e)):x}, v4
    v_exp_f32 v5, v5
    v_add_f32 v5, 1.0, v5
    v_rcp_f32 v5, v5
    v_mul_f32 v4, v4, v5
    v_cvt_pk_bf16_f32 v4, v4, v4
    v_lshlrev_b32 v24, 16, v4
    v_lshlrev_b32 v22, 16, v22
    """)
    n = stamp(a, cfg, 4, sDiag, 6)
    a("s_barrier")
    a(f"""
    v_and_b32 v3, 15, v{vL}
    v_lshlrev_b32 v3, 3, v3
    v_add_u32 v3, {L_ST}, v3
    ds_read_b64 v[4:5], v3
    s_waitcnt lgkmcnt(0)
    v_mov_b32 v6, v4
    """)
    for sh in (4, 8): a(f"v_max_f32_dpp v6, v6, v6 row_ror:{sh} row_mask:0xf bank_mask:0xf")
    a("v_sub_f32 v7, v4, v6\nv_exp_f32 v7, v7\nv_mul_f32 v7, v7, v5")
    for sh in (4, 8): a(f"v_add_f32_dpp v7, v7, v7 row_ror:{sh} row_mask:0xf bank_mask:0xf")
    a(f"""
    s_lshl_b32 s76, s{sGrp}, 10
    s_add_u32 s76, s76, {WS_SG}
    s_lshl_b32 s77, s{sSp}, 6
    s_add_u32 s77, s77, s76
    v_lshlrev_b32 v8, 4, v{vL}
    v_add_u32 v9, s77, v8
    v_add_u32 v8, s76, v8
    v_mov_b32 v12, v6
    v_mov_b32 v13, s{sT}
    v_mov_b32 v14, v7
    v_mov_b32 v15, s{sT}
    s_mov_b64 exec, 15
    buffer_store_dwordx4 v[12:15], v9, s[{SWS}:{SWS+3}], 0 offen sc1
    s_mov_b64 exec, -1
    """)
    poll(a, "L_poll_s", [f"buffer_load_dwordx4 v[16:19], v8, s[{SWS}:{SWS+3}], 0 offen sc1"], [17, 19], sT, 32, 4, vm)
    a("v_mov_b32 v10, v16")
    for sh in (4, 8): a(f"v_max_f32_dpp v10, v10, v10 row_ror:{sh} row_mask:0xf bank_mask:0xf")
    allreduce_cross(a, "v_max_f32", [10], [11])
    a("v_sub_f32 v11, v16, v10\nv_exp_f32 v11, v11\nv_mul_f32 v11, v11, v18")
    for sh in (4, 8): a(f"v_add_f32_dpp v11, v11, v11 row_ror:{sh} row_mask:0xf bank_mask:0xf")
    allreduce_cross(a, "v_add_f32", [11], [12])
    a(f"""
    v_rcp_f32 v12, v11
    v_sub_f32 v13, v4, v10
    v_exp_f32 v13, v13
    v_fma_f32 v14, -v11, v12, 1.0
    v_fma_f32 v12, v14, v12, v12
    v_mul_f32 v13, v13, v12
    v_lshlrev_b32 v3, 2, v{vL}
    v_add_u32 v3, {L_F}, v3
    s_mov_b64 exec, 0xffff
    ds_write_b32 v3, v13
    s_mov_b64 exec, -1
    s_waitcnt lgkmcnt(0)
    s_barrier
    """)
    n = stamp(a, cfg, 5, sDiag, 6)
    a(f"""
    s_lshl_b32 s76, s{sGrp}, 16
    s_lshl_b32 s77, s{sSp}, 12
    s_add_u32 s76, s76, s77
    s_add_u32 s76, s76, {WS_MB1}
    v_lshlrev_b32 v8, 4, v{vL}
    v_add_u32 v8, s76, v8
    s_lshr_b32 s76, s{sGrp}, 3
    s_lshl_b32 s76, s76, 14
    s_and_b32 s77, s{sGrp}, 7
    s_lshl_b32 s77, s77, 11
    s_add_u32 s76, s76, s77
    s_lshl_b32 s77, s{sSp}, 7
    s_add_u32 s76, s76, s77
    s_add_u32 s76, s76, {WS_HB2}
    v_lshlrev_b32 v9, 3, v{vL}
    v_add_u32 v9, s76, v9
    v_mov_b32 v31, s{sT}
    s_barrier
    """)
    MD = 32
    loads = [f"buffer_load_dwordx4 v[{MD+4*i}:{MD+4*i+3}], v8, s[{SWS}:{SWS+3}], 0 offen offset:{i*1024} sc1" for i in range(4)]
    poll(a, "L_poll_m", loads, [MD + 4 * i + q for i in range(4) for q in (1, 3)], sT, 48, 1, vm)
    n = stamp(a, cfg, 6, sDiag, 6)
    a(f"""
    v_add_f32 v{MD}, v{MD}, v{MD+4}
    v_add_f32 v{MD+2}, v{MD+2}, v{MD+6}
    v_add_f32 v{MD+8}, v{MD+8}, v{MD+12}
    v_add_f32 v{MD+10}, v{MD+10}, v{MD+14}
    v_add_f32 v28, v{MD}, v{MD+8}
    v_add_f32 v29, v{MD+2}, v{MD+10}
    """)
    allreduce_cross(a, "v_add_f32", [28, 29], [26, 27])
    a(f"""
    v_cvt_pk_bf16_f32 v30, v28, v29
    s_mov_b64 exec, 0xffff
    buffer_store_dwordx2 v[30:31], v9, s[{SWS}:{SWS+3}], 0 offen sc1
    s_mov_b64 exec, -1
    """)
    n = stamp(a, cfg, 7, sDiag, 6)
    a(f"""
    v_lshlrev_b32 v3, 2, v{vL}
    v_and_b32 v3, 15, v3
    v_add_u32 v3, {L_RED}, v3
    s_barrier
    ds_read_b32 v4, v3
    ds_read_b32 v5, v3 offset:16
    ds_read_b32 v6, v3 offset:32
    ds_read_b32 v7, v3 offset:48
    s_waitcnt lgkmcnt(0)
    v_add_f32 v4, v4, v5
    v_add_f32 v6, v6, v7
    v_add_f32 v4, v4, v6
    v_cvt_pk_bf16_f32 v4, v4, v4
    v_lshlrev_b32 v4, 16, v4
    v_mul_f32 v4, v4, v24
    v_cvt_pk_bf16_f32 v4, v4, v4
    v_lshlrev_b32 v4, 16, v4
    v_add_f32 v4, v4, v22
    v_cvt_pk_bf16_f32 v4, v4, v4
    s_mov_b64 exec, 15
    buffer_store_short v4, v21, s[{SOUT}:{SOUT+3}], 0 offen
    s_mov_b64 exec, -1
    """)
    a(f"""
    s_cmp_lg_u32 s2, 0
    s_cbranch_scc1 L_h_end
    v_mov_b32 v4, s{sT}
    v_mov_b32 v5, {WS_EPOCH}
    s_mov_b64 exec, 1
    buffer_store_dword v4, v5, s[{SWS}:{SWS+3}], 0 offen
    L_h_end:
    """)
    n = stamp(a, cfg, 8, sDiag, 6)
    if cfg.DIAG: a("s_waitcnt vmcnt(0)")
    a("s_endpgm")

def generate(cfg):
    a = Asm()
    a(f"""
    s_cmp_ge_u32 s2, 256
    s_cbranch_scc1 L_exit
    s_load_dwordx16 s[4:19], s[0:1], 0
    s_load_dwordx8 s[20:27], s[0:1], 64
    s_load_dwordx2 s[28:29], s[0:1], 96
    v_lshrrev_b32 v2, 6, v0
    v_and_b32 v1, 63, v0
    v_readfirstlane_b32 s3, v2
    s_cmp_eq_u32 s3, 4
    s_cbranch_scc1 L_helper
    """)
    gen_stream(a, cfg)
    a("L_helper:")
    gen_helper(a, cfg)
    a("L_exit:\ns_endpgm")
    body, added = a.finish()
    ref = open("cdna_kernels/" + NAME + ".s.ref").read()
    head = ref.split("; Override launch geometry")[0]
    txt = head + f"; @launch grid=(256,1,1) block=(320,1,1) lds={LDS_SIZE}\n"
    txt += f""".amdgcn_target "amdgcn-amd-amdhsa--gfx950"
.text
.globl {NAME}_kernel
.p2align 8
.type {NAME}_kernel,@function
{NAME}_kernel:
"""
    txt += body
    txt += f""".section .rodata,"a"
.p2align 6
.amdhsa_kernel {NAME}_kernel
  .amdhsa_next_free_vgpr 256
  .amdhsa_next_free_sgpr 96
  .amdhsa_accum_offset 256
  .amdhsa_group_segment_fixed_size 0
  .amdhsa_kernarg_size 104
  .amdhsa_user_sgpr_count 2
  .amdhsa_user_sgpr_kernarg_segment_ptr 1
  .amdhsa_system_sgpr_workgroup_id_x 1
.end_amdhsa_kernel
"""
    return txt, added
if __name__ == "__main__":
    kw = eval("dict(" + (sys.argv[2] if len(sys.argv) > 2 else "") + ")")
    txt, added = generate(Cfg(**kw))
    out = sys.argv[1] if len(sys.argv) > 1 else "cdna_kernels/" + NAME + ".s"
    open(out, "w").write(txt)
    print("wrote", out, len(txt), "bytes; nops added", added)
```

```python
import sys, math, struct
sys.path.insert(0, "gen")
from asmlib import Asm
NAME = "recurrent_scan__gqa_block_cached__dense_activation_gelu__decode"
def fb(x): return struct.unpack("<I", struct.pack("<f", x))[0]
WS_EPOCH = 0
WS_QP = 0x1000
WS_HP = 0x22000
WS_SG = 0x30000
WS_MB1 = 0x40000
WS_SP = 0xC0000
WS_YP = 0x140000
WS_DBG = 0x1C0000
WS_SIZE = 0x200000
L_WT = 131072
L_MISC = 147456
L_XN = L_MISC
L_QL = L_MISC + 2048
L_TG = L_MISC + 3072
L_ST = L_MISC + 3200
L_F = L_MISC + 3328
L_RED = L_MISC + 3392
L_OPR = L_MISC + 3520
LDS_SIZE = L_MISC + 4096
L_OP = L_WT
L_SPL = L_WT + 8192
RING = 8

class Cfg:
    CAP = 2; PRE = 2
    NT = " nt"; WNT = " nt"; QNT = " nt"
    DIAG = False
    WO_START = 30; WO_PER = 8
    BAR3_AT = 27
    SKIP_WO = False; SKIP_FFN = False
    POLL_LIMIT = 30000
    SL_Q = 1; SL_Y = 1; SL_S = 32; SL_M = 1; SL_P = 1; SL_H = 32
    PRE_Q = 0; PRE_M = 0; PRE_P = 0
    def __init__(self, **kw):
        for k, v in kw.items():
            assert hasattr(self, k), k
            setattr(self, k, v)

def srd(a, dst, lo, hi, size, add=None):
    if add is None:
        a(f"s_mov_b32 s{dst}, s{lo}\ns_and_b32 s{dst+1}, s{hi}, 0xffff")
    else:
        a(f"s_add_u32 s{dst}, s{lo}, s{add}\ns_addc_u32 s{dst+1}, s{hi}, 0\ns_and_b32 s{dst+1}, s{dst+1}, 0xffff")
    a(f"s_mov_b32 s{dst+2}, 0x{size:x}\ns_mov_b32 s{dst+3}, 0x20000")

def stamp(a, cfg, idx, sreg_wave_slot, tmpv):
    if not cfg.DIAG: return 0
    a(f"s_memrealtime s[90:91]\ns_waitcnt lgkmcnt(0)")
    a(f"v_mov_b32 v{tmpv}, s90\nv_mov_b32 v{tmpv+1}, s{sreg_wave_slot}")
    a(f"s_mov_b64 s[92:93], exec\ns_mov_b64 exec, 1")
    a(f"buffer_store_dword v{tmpv}, v{tmpv+1}, s[44:47], 0 offen offset:{idx*4}")
    a(f"s_mov_b64 exec, s[92:93]")
    return 1

def dpp_red(a, op, regs, shifts):
    for sh in shifts:
        for r in regs:
            a(f"{op}_dpp v{r}, v{r}, v{r} row_ror:{sh} row_mask:0xf bank_mask:0xf")
def allreduce_cross(a, op, regs, tmps, which=(16, 32)):
    for w in which:
        sw = f"v_permlane{w}_swap_b32"
        for r, t in zip(regs, tmps): a(f"v_mov_b32 v{t}, v{r}")
        for r, t in zip(regs, tmps): a(f"{sw} v{r}, v{t}")
        for r, t in zip(regs, tmps): a(f"{op} v{r}, v{r}, v{t}")

class VM:
    def __init__(self, a): self.a = a; self.q = []
    def issue(self, tag, n=1): self.q += [tag] * n
    def wait(self, tag):
        idx = [i for i, t in enumerate(self.q) if t == tag]
        if not idx: return
        last = idx[-1]
        n = len(self.q) - 1 - last
        assert n <= 63, n
        self.a(f"s_waitcnt vmcnt({n})")
        self.q = self.q[last + 1:]

def tagcheck(a, tagregs, sT, acc, full):
    if full:
        a(f"v_xor_b32 v{acc}, s{sT}, v{tagregs[0]}")
        for t in tagregs[1:]:
            a(f"v_xor_b32 v{acc+1}, s{sT}, v{t}\nv_or_b32 v{acc}, v{acc}, v{acc+1}")
    else:
        for t in tagregs: a(f"v_xor_b32 v{t}, s{sT}, v{t}")
        rest = list(tagregs)
        if len(rest) >= 3:
            a(f"v_or3_b32 v{acc}, v{rest[0]}, v{rest[1]}, v{rest[2]}"); rest = rest[3:]
        else:
            a(f"v_or_b32 v{acc}, v{rest[0]}, v{rest[1]}"); rest = rest[2:]
        while rest:
            if len(rest) >= 2:
                a(f"v_or3_b32 v{acc}, v{acc}, v{rest[0]}, v{rest[1]}"); rest = rest[2:]
            else:
                a(f"v_or_b32 v{acc}, v{acc}, v{rest[0]}"); rest = rest[1:]
        a(f"v_and_b32 v{acc}, 0xff, v{acc}")
    a(f"v_cmp_ne_u32 vcc, 0, v{acc}")
def poll(a, cfg, name, loads, tagregs, sT, acc, sleep, vm=None, cnt="s70", full=False, presleep=0):
    a(f"s_mov_b32 {cnt}, {cfg.POLL_LIMIT}")
    if presleep: a(f"s_sleep {presleep}")
    a(f"s_nop 4")
    a(f"{name}:")
    for l in loads: a(l)
    a("s_waitcnt vmcnt(0)")
    tagcheck(a, tagregs, sT, acc, full)
    a(f"s_cbranch_vccz {name}_done")
    a(f"s_sub_u32 {cnt}, {cnt}, 1")
    a(f"s_cmp_eq_u32 {cnt}, 0")
    a(f"s_cbranch_scc1 {name}_done")
    if sleep: a(f"s_sleep {sleep}")
    a(f"s_branch {name}")
    a(f"{name}_done:")
    a("s_nop 4")
    if vm: vm.q = []
def settag(a, regs, sT, sMask):
    for r in regs: a(f"v_bfi_b32 v{r}, s{sMask}, v{r+1000}, v{r}".replace(f"v{r+1000}", "VT"))

def tile_voff(a, dst, t1, t2, vL, stride_expr_shift=None, stride=None):
    a(f"v_lshrrev_b32 v{t1}, 3, v{vL}")
    if stride_expr_shift is not None: a(f"v_lshlrev_b32 v{t1}, {stride_expr_shift}, v{t1}")
    else: a(f"v_mul_u32_u24 v{t1}, {stride}, v{t1}")
    a(f"""
    v_bfe_u32 v{t2}, v{vL}, 4, 2
    v_lshlrev_b32 v{t2}, 1, v{t2}
    v_and_b32 v{dst}, 7, v{vL}
    v_xor_b32 v{dst}, v{dst}, v{t2}
    v_lshl_add_u32 v{dst}, v{dst}, 4, v{t1}
    """)

def gen_stream(a, cfg):
    SK, SV, SWO, SWS, SWQ = 32, 36, 40, 44, 48
    sWB, sOff, sT, sGrp, sSp, sDiag, sMk = 64, 65, 66, 67, 68, 72, 71
    vL = 1
    vKD, vVD, vKR, vVR = 2, 6, 8, 12
    vWO = 20; TX = 21; T0 = 22
    QB = 32; WOR = 32; WOP = 64
    S = 96; P = 128
    AK = 144; BV = 144
    O = 208; AR = 240; F = 248; VT = 252
    vm = VM(a)
    tile_voff(a, T0 + 3, T0 + 4, T0 + 5, vL, stride_expr_shift=13)
    a(f"""
    s_lshr_b32 s75, s2, 2
    s_lshl_b32 s75, s75, 7
    s_and_b32 s76, s2, 3
    s_lshl_b32 s76, s76, 20
    s_add_u32 s75, s75, s76
    s_lshl_b32 s76, s3, 18
    s_add_u32 s75, s75, s76
    v_add_u32 v{T0+3}, s75, v{T0+3}
    s_lshl_b32 s78, s3, 12
    s_add_u32 s78, s78, {L_WT}
    v_lshrrev_b32 v{T0}, 4, v{vL}
    v_and_b32 v{T0+1}, 15, v{vL}
    s_lshl_b32 s73, s3, 13
    s_lshl_b32 s{sWB}, s3, 15
    v_lshlrev_b32 v{T0+2}, 8, v{T0}
    v_add_u32 v{T0+2}, s73, v{T0+2}
    """)
    for n in range(4):
        a(f"v_add_u32 v{T0+4}, {4*n}, v{T0}\nv_xor_b32 v{T0+4}, v{T0+4}, v{T0+1}\nv_lshl_add_u32 v{vKD+n}, v{T0+4}, 4, v{T0+2}")
    a("s_waitcnt lgkmcnt(0)")
    if cfg.DIAG: a("s_memrealtime s[52:53]")
    srd(a, SWQ, 10, 11, 512 * 8192)
    for n in range(4):
        a(f"s_add_u32 m0, s78, {n*1024}\ns_mov_b32 s77, {n*8*8192}")
        a(f"buffer_load_dwordx4 v{T0+3}, s[{SWQ}:{SWQ+3}], s77 offen{cfg.QNT} lds")
    vm.issue("wq", 4)
    if cfg.DIAG: a("s_memrealtime s[54:55]")
    a("s_lshl_b32 s74, s2, 19")
    srd(a, SK, 6, 7, 0x80000, add=74)
    def issue(k):
        kk = k & 31
        so = (kk >> 1) * 32768 + (kk & 1) * 4096
        a(f"s_add_u32 m0, s{sWB}, {(k & 7) * 4096}")
        a(f"s_mov_b32 s{sOff}, {so}")
        for n in range(4):
            vo = (vKD + n) if k < 32 else (vVD + (n & 1))
            sr = SK if k < 32 else SV
            a(f"buffer_load_dwordx4 v{vo}, s[{sr}:{sr+3}], s{sOff} offen offset:{n*1024}{cfg.NT} lds")
        vm.issue(("slot", k), 4)
    issue(0); issue(1); p = 2
    if cfg.DIAG: a("s_memrealtime s[56:57]")
    srd(a, SV, 8, 9, 0x80000, add=74)
    srd(a, SWS, 28, 29, WS_SIZE)
    srd(a, SWO, 12, 13, 4096 * 1024)
    for n in range(2):
        a(f"v_lshlrev_b32 v{T0+3}, 1, v{T0}\nv_add_u32 v{T0+3}, {8*n}, v{T0+3}\nv_xor_b32 v{T0+3}, v{T0+3}, v{T0+1}\nv_lshl_add_u32 v{vVD+n}, v{T0+3}, 4, v{T0+2}")
    a(f"v_lshlrev_b32 v{T0+4}, 8, v{T0+1}\nv_add_u32 v{T0+4}, s{sWB}, v{T0+4}")
    for j in range(4):
        a(f"v_add_u32 v{T0+3}, {4*j}, v{T0}\nv_xor_b32 v{T0+3}, v{T0+3}, v{T0+1}\nv_lshl_add_u32 v{vKR+j}, v{T0+3}, 4, v{T0+4}")
    a(f"""
    v_lshrrev_b32 v{T0+5}, 2, v{vL}
    v_lshlrev_b32 v{T0+4}, 8, v{T0+5}
    v_add_u32 v{T0+4}, s{sWB}, v{T0+4}
    v_and_b32 v{T0+6}, 1, v{vL}
    v_lshl_add_u32 v{T0+4}, v{T0+6}, 3, v{T0+4}
    v_and_b32 v{T0+5}, 7, v{T0+5}
    v_lshlrev_b32 v{T0+5}, 1, v{T0+5}
    v_bfe_u32 v{T0+6}, v{vL}, 1, 1
    """)
    for dg in range(8):
        a(f"v_add_u32 v{T0+3}, {2*dg}, v{T0+6}\nv_xor_b32 v{T0+3}, v{T0+3}, v{T0+5}\nv_lshl_add_u32 v{vVR+dg}, v{T0+3}, 4, v{T0+4}")
    a(f"s_lshr_b32 s{sGrp}, s2, 4\ns_and_b32 s{sSp}, s2, 15\ns_movk_i32 s{sMk}, 0xff")
    a(f"""
    s_and_b32 s75, s{sGrp}, 7
    s_lshl_b32 s75, s75, 9
    s_and_b32 s76, s3, 1
    s_lshl_b32 s76, s76, 8
    s_add_u32 s75, s75, s76
    s_lshl_b32 s76, s{sSp}, 3
    s_add_u32 s75, s75, s76
    s_lshr_b32 s76, s3, 1
    s_lshl_b32 s76, s76, 2
    s_add_u32 s75, s75, s76
    s_lshl_b32 s75, s75, 10
    v_lshlrev_b32 v{vWO}, 4, v{vL}
    v_add_u32 v{vWO}, s75, v{vWO}
    """)
    if cfg.DIAG:
        a(f"s_mul_i32 s{sDiag}, s2, 5\ns_add_u32 s{sDiag}, s{sDiag}, s3\ns_lshl_b32 s{sDiag}, s{sDiag}, 7\ns_add_u32 s{sDiag}, s{sDiag}, {WS_DBG}")
    vm.wait("wq")
    if cfg.DIAG: a("s_memrealtime s[58:59]")
    a("s_barrier")
    if cfg.DIAG: a("s_memrealtime s[60:61]")
    for r in range(QB, QB + 64): a(f"v_mov_b32 v{r}, 0")
    while p < RING:
        vm.wait(("slot", p - cfg.CAP)); issue(p); p += 1
    if cfg.DIAG: a("s_memrealtime s[62:63]")
    a("s_barrier")
    n = stamp(a, cfg, 1, sDiag, T0 + 8); vm.issue("st", n)
    if cfg.DIAG:
        for qi in range(6):
            a(f"v_mov_b32 v{T0+8}, s{52+2*qi}\nv_mov_b32 v{T0+9}, s{sDiag}\ns_mov_b64 exec, 1\nbuffer_store_dword v{T0+8}, v{T0+9}, s[44:47], 0 offen offset:{(16+qi)*4}\ns_mov_b64 exec, -1")
            vm.issue("st", 1)
    a(f"""
    v_and_b32 v{T0+3}, 3, v{vL}
    v_lshlrev_b32 v{T0+3}, 8, v{T0+3}
    v_lshl_add_u32 v{T0+3}, v{T0}, 4, v{T0+3}
    v_add_u32 v{T0+3}, {L_QL}, v{T0+3}
    v_mov_b32 v{T0+4}, {L_TG}
    ds_read_b32 v{VT}, v{T0+4}
    """)
    for t in range(4):
        m = 0x000F000F << (4 * t)
        a(f"s_mov_b32 exec_lo, 0x{m:x}\ns_mov_b32 exec_hi, 0x{m:x}")
        for j in range(4):
            r = QB + (t * 4 + j) * 4
            a(f"ds_read_b128 v[{r}:{r+3}], v{T0+3} offset:{j*64}")
        if t == 1: a("s_waitcnt lgkmcnt(4)")
    a("s_mov_b64 exec, -1")
    a("s_waitcnt lgkmcnt(0)")
    a(f"v_readfirstlane_b32 s{sT}, v{VT}")
    a(f"s_and_b32 s{sT}, s{sT}, 0xff")
    wo_done = 0
    def wo_load(idx):
        if cfg.SKIP_WO: return
        dl, e = idx >> 1, idx & 1
        r = WOR + idx * 4
        a(f"s_mov_b32 s77, {(e * 128 + dl) * 1024}")
        a(f"buffer_load_dwordx4 v[{r}:{r+3}], v{vWO}, s[{SWO}:{SWO+3}], s77 offen{cfg.WNT}")
        vm.issue("wo")
    def consume_k(u):
        m, blk = u >> 1, u & 1
        pi, t = m >> 2, m & 3
        D = S + (2 * pi + blk) * 4
        A = AK + (u & 1) * 16
        for j in range(4):
            a(f"ds_read_b128 v[{A+4*j}:{A+4*j+3}], v{vKR+j} offset:{(u & 7) * 4096}")
        for j in range(4):
            a(f"s_waitcnt lgkmcnt({3-j})")
            B = QB + (t * 4 + j) * 4
            C = "0" if (t == 0 and j == 0) else f"v[{D}:{D+3}]"
            a(f"v_mfma_f32_16x16x32_bf16 v[{D}:{D+3}], v[{A+4*j}:{A+4*j+3}], v[{B}:{B+3}], {C}")
    def softmax():
        c = (128 ** -0.5) * math.log2(math.e)
        mx, t1 = T0 + 3, T0 + 4
        a(f"s_mov_b32 s78, 0x{fb(c):x}")
        a(f"v_max3_f32 v{mx}, v{S}, v{S+1}, v{S+2}")
        for r in range(S + 3, S + 31, 2):
            a(f"v_max3_f32 v{mx}, v{mx}, v{r}, v{r+1}")
        a(f"v_max_f32 v{mx}, v{mx}, v{S+31}")
        dpp_red(a, "v_max_f32", [mx], (4, 8))
        allreduce_cross(a, "v_max_f32", [mx], [t1])
        a(f"v_mul_f32 v{mx}, s78, v{mx}")
        for r in range(S, S + 32):
            a(f"v_fma_f32 v{r}, v{r}, s78, -v{mx}")
        for r in range(S, S + 32):
            a(f"v_exp_f32 v{r}, v{r}")
        ls = [T0 + 5, T0 + 6, T0 + 7, T0 + 8]
        for q in range(4):
            a(f"v_add_f32 v{ls[q]}, v{S+q}, v{S+4+q}")
        for r in range(S + 8, S + 32):
            a(f"v_add_f32 v{ls[r & 3]}, v{ls[r & 3]}, v{r}")
        for q in range(16):
            a(f"v_cvt_pk_bf16_f32 v{P+q}, v{S+2*q}, v{S+2*q+1}")
        a(f"v_add_f32 v{ls[0]}, v{ls[0]}, v{ls[1]}\nv_add_f32 v{ls[2]}, v{ls[2]}, v{ls[3]}\nv_add_f32 v{ls[0]}, v{ls[0]}, v{ls[2]}")
        dpp_red(a, "v_add_f32", [ls[0]], (4, 8))
        allreduce_cross(a, "v_add_f32", [ls[0]], [t1])
        a(f"""
        v_mov_b32 v{T0+8}, v{mx}
        v_mov_b32 v{T0+9}, v{ls[0]}
        s_lshl_b32 s79, s3, 5
        s_add_u32 s79, s79, {L_ST}
        v_lshlrev_b32 v{TX}, 3, v{vL}
        v_add_u32 v{TX}, s79, v{TX}
        s_mov_b64 exec, 15
        ds_write_b64 v{TX}, v[{T0+8}:{T0+9}]
        s_mov_b64 exec, -1
        s_waitcnt lgkmcnt(0)
        s_barrier
        """)
    def consume_v(k):
        kk = k - 32
        m, blk = kk >> 1, kk & 1
        pi, t = m >> 2, m & 3
        B = BV + (m & 1) * 32
        ar = AR + (m & 1) * 4
        for dg in range(8):
            r = B + dg * 4 + blk * 2
            a(f"ds_read_b64_tr_b16 v[{r}:{r+1}], v{vVR+dg} offset:{(k & 7) * 4096}")
        if blk == 0:
            if t > 0:
                for q in range(4):
                    a(f"v_mov_b32_dpp v{ar+q}, v{P+4*pi+q} row_shl:{4*t} row_mask:0xf bank_mask:0xf bound_ctrl:0")
        else:
            Aop = ar if t > 0 else P + 4 * pi
            for dg in range(8):
                a(f"s_waitcnt lgkmcnt({7-dg})")
                C = "0" if m == 0 else f"v[{O+4*dg}:{O+4*dg+3}]"
                a(f"v_mfma_f32_16x16x32_bf16 v[{O+4*dg}:{O+4*dg+3}], v[{Aop}:{Aop+3}], v[{B+4*dg}:{B+4*dg+3}], {C}")
    def tail_addrs():
        a(f"""
        v_lshlrev_b32 v{T0+3}, 4, v{vL}
        s_lshl_b32 s79, s3, 11
        s_add_u32 s79, s79, {L_OP}
        v_add_u32 v{T0+3}, s79, v{T0+3}
        v_lshlrev_b32 v{T0+4}, 3, v0
        v_add_u32 v{T0+4}, {L_OP}, v{T0+4}
        s_lshl_b32 s79, s{sGrp}, 15
        s_lshl_b32 s82, s{sSp}, 7
        s_add_u32 s79, s79, s82
        s_add_u32 s79, s79, {WS_MB1}
        v_lshrrev_b32 v{T0+5}, 4, v0
        v_lshlrev_b32 v{T0+5}, 11, v{T0+5}
        v_and_b32 v{T0+6}, 15, v0
        v_lshl_add_u32 v{T0+5}, v{T0+6}, 3, v{T0+5}
        v_add_u32 v{T0+5}, s79, v{T0+5}
        s_lshl_b32 s79, s2, 11
        s_add_u32 s79, s79, {WS_SP}
        v_lshlrev_b32 v{T0+6}, 3, v0
        v_add_u32 v{T0+6}, s79, v{T0+6}
        s_lshr_b32 s79, s2, 7
        s_lshl_b32 s79, s79, 18
        s_and_b32 s82, s2, 127
        s_lshl_b32 s82, s82, 4
        s_add_u32 s79, s79, s82
        s_add_u32 s79, s79, {WS_SP}
        v_lshrrev_b32 v{TX}, 1, v0
        v_lshlrev_b32 v{TX}, 11, v{TX}
        v_and_b32 v{T0+7}, 1, v0
        v_lshl_add_u32 v{TX}, v{T0+7}, 3, v{TX}
        v_add_u32 v{TX}, s79, v{TX}
        """)
    c = 0
    TOTAL = 64
    while c < TOTAL:
        if c == 32:
            ex = 0
            while ex < cfg.PRE and p < TOTAL and p - RING <= c - 1:
                issue(p); p += 1; ex += 1
            n = stamp(a, cfg, 2, sDiag, T0 + 8); vm.issue("st", n)
            a("s_nop 7")
            softmax()
            n = stamp(a, cfg, 3, sDiag, T0 + 8); vm.issue("st", n)
        backlog = p - c
        vm.wait(("slot", c))
        if p < TOTAL and p - RING <= c - 1 and (backlog <= cfg.CAP or (c & 1 and backlog <= RING)):
            vm.wait(("slot", p - cfg.CAP))
            issue(p); p += 1
        if c >= 32 + cfg.WO_START:
            for _ in range(cfg.WO_PER):
                if wo_done < 8: wo_load(wo_done); wo_done += 1
        if c == 32 + cfg.BAR3_AT:
            a("s_barrier")
            a(f"s_lshl_b32 s79, s3, 4\ns_add_u32 s79, s79, {L_F}\nv_mov_b32 v{T0+3}, s79\nds_read_b128 v[{F}:{F+3}], v{T0+3}")
            a("s_waitcnt lgkmcnt(0)")
            tail_addrs()
        if c < 32: consume_k(c)
        else: consume_v(c)
        c += 1
    while wo_done < 8:
        wo_load(wo_done); wo_done += 1
    n = stamp(a, cfg, 4, sDiag, T0 + 8); vm.issue("st", n)
    a("s_mov_b64 exec, 0xffff")
    for dg in range(8):
        for r in range(4):
            a(f"v_mul_f32 v{O+4*dg+r}, v{O+4*dg+r}, v{F+r}")
        a(f"ds_write_b128 v{T0+3}, v[{O+4*dg}:{O+4*dg+3}] offset:{dg*256}")
    a("s_mov_b64 exec, -1\ns_waitcnt lgkmcnt(0)\ns_barrier")
    R = 144
    for w in range(4):
        a(f"ds_read_b64 v[{R+2*w}:{R+2*w+1}], v{T0+4} offset:{w*2048}")
    a("s_waitcnt lgkmcnt(2)")
    a(f"v_add_f32 v{R}, v{R}, v{R+2}\nv_add_f32 v{R+1}, v{R+1}, v{R+3}")
    a("s_waitcnt lgkmcnt(0)")
    a(f"v_add_f32 v{R+4}, v{R+4}, v{R+6}\nv_add_f32 v{R+5}, v{R+5}, v{R+7}")
    a(f"v_add_f32 v{R+8}, v{R}, v{R+4}\nv_add_f32 v{R+9}, v{R+1}, v{R+5}")
    a(f"v_bfi_b32 v{R+8}, s{sMk}, v{VT}, v{R+8}\nv_bfi_b32 v{R+9}, s{sMk}, v{VT}, v{R+9}")
    a(f"buffer_store_dwordx2 v[{R+8}:{R+9}], v{T0+5}, s[{SWS}:{SWS+3}], 0 offen sc1")
    vm.issue("mb")
    n = stamp(a, cfg, 5, sDiag, T0 + 8); vm.issue("st", n)
    vm.wait("wo")
    a("s_mov_b32 s80, 0x05040100\ns_mov_b32 s81, 0x07060302")
    for dl in range(4):
        A_ = WOR + dl * 8; B_ = A_ + 4
        for k in range(4):
            o = WOP + dl * 8 + 2 * k
            a(f"v_perm_b32 v{o}, v{B_+k}, v{A_+k}, s80\nv_perm_b32 v{o+1}, v{B_+k}, v{A_+k}, s81")
    a(f"""
    s_and_b32 s79, s3, 1
    s_lshl_b32 s79, s79, 5
    s_lshr_b32 s82, s3, 1
    s_lshl_b32 s82, s82, 4
    s_add_u32 s79, s79, s82
    s_add_u32 s79, s79, {L_OPR}
    v_mov_b32 v{T0+3}, s79
    s_lshl_b32 s79, s3, 11
    s_add_u32 s79, s79, {L_SPL}
    v_lshlrev_b32 v{T0+5}, 5, v{vL}
    v_add_u32 v{T0+5}, s79, v{T0+5}
    v_add_u32 v{T0+4}, 8192, v{T0+4}
    s_barrier
    ds_read_b128 v[{R}:{R+3}], v{T0+3}
    s_waitcnt lgkmcnt(0)
    """)
    n = stamp(a, cfg, 6, sDiag, T0 + 8)
    ACC = 176
    for dl in range(4):
        for cc in range(8):
            C = "0" if dl == 0 else f"v{ACC+cc}"
            a(f"v_dot2_f32_bf16 v{ACC+cc}, v{R+dl}, v{WOP+dl*8+cc}, {C}")
    a(f"ds_write_b128 v{T0+5}, v[{ACC}:{ACC+3}]\nds_write_b128 v{T0+5}, v[{ACC+4}:{ACC+7}] offset:16")
    a("s_waitcnt lgkmcnt(0)\ns_barrier")
    R2 = 184
    for w in range(4):
        a(f"ds_read_b64 v[{R2+2*w}:{R2+2*w+1}], v{T0+4} offset:{w*2048}")
    a("s_waitcnt lgkmcnt(2)")
    a(f"v_add_f32 v{R2}, v{R2}, v{R2+2}\nv_add_f32 v{R2+1}, v{R2+1}, v{R2+3}")
    a("s_waitcnt lgkmcnt(0)")
    a(f"v_add_f32 v{R2+4}, v{R2+4}, v{R2+6}\nv_add_f32 v{R2+5}, v{R2+5}, v{R2+7}")
    a(f"v_add_f32 v{R+8}, v{R2}, v{R2+4}\nv_add_f32 v{R+9}, v{R2+1}, v{R2+5}")
    a(f"v_bfi_b32 v{R+8}, s{sMk}, v{VT}, v{R+8}\nv_bfi_b32 v{R+9}, s{sMk}, v{VT}, v{R+9}")
    a(f"buffer_store_dwordx2 v[{R+8}:{R+9}], v{T0+6}, s[{SWS}:{SWS+3}], 0 offen sc1")
    n = stamp(a, cfg, 7, sDiag, T0 + 8)
    D2 = 160
    poll(a, cfg, "L_poll_sp", [f"buffer_load_dwordx2 v[{D2}:{D2+1}], v{TX}, s[{SWS}:{SWS+3}], 0 offen sc1"], [D2, D2 + 1], sT, T0 + 5, cfg.SL_P, vm, presleep=cfg.PRE_P)
    n = stamp(a, cfg, 8, sDiag, T0 + 8)
    A_, B_ = D2, D2 + 1
    a(f"""
    v_permlane32_swap_b32 v{A_}, v{B_}
    v_add_f32 v{A_}, v{A_}, v{B_}
    v_mov_b32 v{B_}, v{A_}
    v_permlane16_swap_b32 v{A_}, v{B_}
    v_add_f32 v{A_}, v{A_}, v{B_}
    """)
    dpp_red(a, "v_add_f32", [A_], (2, 4, 8))
    a(f"""
    v_lshrrev_b32 v{T0+3}, 5, v{vL}
    v_and_b32 v{T0+4}, 1, v{vL}
    v_lshl_add_u32 v{T0+3}, v{T0+4}, 1, v{T0+3}
    v_lshlrev_b32 v{T0+3}, 2, v{T0+3}
    s_lshl_b32 s79, s3, 4
    s_add_u32 s79, s79, {L_RED}
    v_add_u32 v{T0+3}, s79, v{T0+3}
    s_mov_b32 exec_lo, 3
    s_mov_b32 exec_hi, 3
    ds_write_b32 v{T0+3}, v{A_}
    s_mov_b64 exec, -1
    s_waitcnt lgkmcnt(0)
    s_barrier
    """)
    n = stamp(a, cfg, 9, sDiag, T0 + 8)
    if cfg.DIAG: a("s_waitcnt vmcnt(0)")
    a("s_endpgm")

def gen_helper(a, cfg):
    SX, SW1, SB1, SW2, SB2, SOUT, SWS = 32, 40, 48, 52, 56, 60, 44
    sT, sGrp, sSp, sC0, sBf, sDiag, sMk, sT8 = 66, 67, 68, 69, 71, 72, 73, 74
    vL = 1; VT = 63
    vm = VM(a)
    XA = 64
    TA = 80
    a("s_setprio 3")
    a("s_waitcnt lgkmcnt(0)")
    srd(a, SX, 4, 5, 2048)
    X = 8
    a(f"v_lshlrev_b32 v2, 4, v{vL}")
    a(f"buffer_load_dwordx4 v[{X}:{X+3}], v2, s[{SX}:{SX+3}], 0 offen")
    a(f"buffer_load_dwordx4 v[{X+4}:{X+7}], v2, s[{SX}:{SX+3}], 0 offen offset:1024")
    vm.issue("x", 2)
    a(f"s_load_dword s{sT}, s[28:29], {WS_EPOCH}")
    srd(a, SWS, 28, 29, WS_SIZE)
    srd(a, SW1, 16, 17, 512 * 3584)
    srd(a, SB1, 18, 19, 3584)
    srd(a, SW2, 20, 21, 1792 * 1024)
    srd(a, SB2, 22, 23, 1024)
    srd(a, SOUT, 24, 25, 2048)
    a(f"""
    s_lshr_b32 s{sGrp}, s2, 4
    s_and_b32 s{sSp}, s2, 15
    s_lshr_b32 s{sBf}, s2, 7
    s_and_b32 s76, s2, 127
    s_lshl_b32 s{sC0}, s76, 2
    s_movk_i32 s{sMk}, 0xff
    """)
    a(f"""
    v_lshrrev_b32 v3, 2, v{vL}
    v_lshlrev_b32 v4, 7, v3
    v_and_b32 v5, 1, v{vL}
    v_lshl_add_u32 v4, v5, 3, v4
    v_add_u32 v4, {L_WT}, v4
    v_lshrrev_b32 v3, 1, v3
    v_and_b32 v3, 3, v3
    v_lshlrev_b32 v3, 1, v3
    v_bfe_u32 v5, v{vL}, 1, 1
    """)
    for ct in range(4):
        a(f"v_add_u32 v6, {2*ct}, v5\nv_xor_b32 v6, v6, v3\nv_lshl_add_u32 v{TA+ct}, v6, 4, v4")
    if cfg.DIAG:
        a(f"s_mul_i32 s{sDiag}, s2, 5\ns_add_u32 s{sDiag}, s{sDiag}, 4\ns_lshl_b32 s{sDiag}, s{sDiag}, 7\ns_add_u32 s{sDiag}, s{sDiag}, {WS_DBG}")
        n = stamp(a, cfg, 0, sDiag, 6); vm.issue("st", n)
    Fx = 16
    vm.wait("x")
    for b in range(2):
        for e in range(4):
            a(f"v_lshlrev_b32 v{Fx+8*b+2*e}, 16, v{X+4*b+e}\nv_and_b32 v{Fx+8*b+2*e+1}, 0xffff0000, v{X+4*b+e}")
    s0, s1, t0, t1 = 32, 33, 34, 35
    for b in range(2):
        f = Fx + 8 * b
        a(f"v_pk_add_f32 v[{36+4*b}:{37+4*b}], v[{f}:{f+1}], v[{f+2}:{f+3}]\nv_pk_add_f32 v[{38+4*b}:{39+4*b}], v[{f+4}:{f+5}], v[{f+6}:{f+7}]")
    for b in range(2):
        a(f"v_pk_add_f32 v[{36+4*b}:{37+4*b}], v[{36+4*b}:{37+4*b}], v[{38+4*b}:{39+4*b}]")
    for b in range(2):
        a(f"v_add_f32 v{s0+b}, v{36+4*b}, v{37+4*b}")
    dpp_red(a, "v_add_f32", [s0, s1], (8, 4, 2, 1)); allreduce_cross(a, "v_add_f32", [s0, s1], [t0, t1])
    a(f"v_mul_f32 v{s0}, 0x3b000000, v{s0}\nv_mul_f32 v{s1}, 0x3b000000, v{s1}")
    Dv = 36
    q0, q1 = 52, 53
    for e in range(8):
        for b in range(2):
            a(f"v_sub_f32 v{Dv+8*b+e}, v{Fx+8*b+e}, v{s0+b}")
    for b in range(2):
        a(f"v_pk_mul_f32 v[{54+2*b}:{55+2*b}], v[{Dv+8*b}:{Dv+8*b+1}], v[{Dv+8*b}:{Dv+8*b+1}]")
    for e in range(2, 8, 2):
        for b in range(2):
            a(f"v_pk_fma_f32 v[{54+2*b}:{55+2*b}], v[{Dv+8*b+e}:{Dv+8*b+e+1}], v[{Dv+8*b+e}:{Dv+8*b+e+1}], v[{54+2*b}:{55+2*b}]")
    for b in range(2): a(f"v_add_f32 v{q0+b}, v{54+2*b}, v{55+2*b}")
    dpp_red(a, "v_add_f32", [q0, q1], (8, 4, 2, 1)); allreduce_cross(a, "v_add_f32", [q0, q1], [t0, t1])
    a(f"v_mul_f32 v{q0}, 0x3b000000, v{q0}\nv_mul_f32 v{q1}, 0x3b000000, v{q1}")
    a(f"""
    v_cvt_pk_bf16_f32 v54, v{s0}, v{s1}
    v_cvt_pk_bf16_f32 v55, v{q0}, v{q1}
    v_lshlrev_b32 v{s0}, 16, v54
    v_and_b32 v{s1}, 0xffff0000, v54
    v_lshlrev_b32 v{q0}, 16, v55
    v_and_b32 v{q1}, 0xffff0000, v55
    v_add_f32 v{q0}, 0x3727c5ac, v{q0}
    v_add_f32 v{q1}, 0x3727c5ac, v{q1}
    v_cvt_pk_bf16_f32 v55, v{q0}, v{q1}
    v_lshlrev_b32 v{q0}, 16, v55
    v_and_b32 v{q1}, 0xffff0000, v55
    v_sqrt_f32 v{q0}, v{q0}
    v_sqrt_f32 v{q1}, v{q1}
    """)
    for b in range(2):
        for e in range(8):
            a(f"v_sub_f32 v{Fx+8*b+e}, v{Fx+8*b+e}, v{s0+b}")
    a(f"""
    v_cvt_pk_bf16_f32 v55, v{q0}, v{q1}
    v_lshlrev_b32 v{q0}, 16, v55
    v_and_b32 v{q1}, 0xffff0000, v55
    v_rcp_f32 v56, v{q0}
    v_rcp_f32 v58, v{q1}
    """)
    for b in range(2):
        for e in range(0, 8, 2):
            a(f"v_cvt_pk_bf16_f32 v{X+4*b+e//2}, v{Fx+8*b+e}, v{Fx+8*b+e+1}")
    a("v_mov_b32 v57, v56\nv_mov_b32 v59, v58")
    a(f"v_mov_b32 v60, v{q0}\nv_mov_b32 v61, v{q0}\nv_mov_b32 v54, v{q1}\nv_mov_b32 v55, v{q1}")
    for b in range(2):
        for e in range(4):
            a(f"v_lshlrev_b32 v{Fx+8*b+2*e}, 16, v{X+4*b+e}\nv_and_b32 v{Fx+8*b+2*e+1}, 0xffff0000, v{X+4*b+e}")
    rc = [56, 58]; sd = [60, 54]
    for b in range(2):
        for e in range(0, 8, 2): a(f"v_pk_mul_f32 v[{Dv+8*b+e}:{Dv+8*b+e+1}], v[{Fx+8*b+e}:{Fx+8*b+e+1}], v[{rc[b]}:{rc[b]+1}]")
    for b in range(2):
        for e in range(0, 8, 2): a(f"v_pk_fma_f32 v[{Fx+8*b+e}:{Fx+8*b+e+1}], v[{Dv+8*b+e}:{Dv+8*b+e+1}], v[{sd[b]}:{sd[b]+1}], v[{Fx+8*b+e}:{Fx+8*b+e+1}] neg_lo:[1,0,0] neg_hi:[1,0,0]")
    for b in range(2):
        for e in range(0, 8, 2): a(f"v_pk_fma_f32 v[{Fx+8*b+e}:{Fx+8*b+e+1}], v[{Fx+8*b+e}:{Fx+8*b+e+1}], v[{rc[b]}:{rc[b]+1}], v[{Dv+8*b+e}:{Dv+8*b+e+1}]")
    for b in range(2):
        for e in range(0, 8, 2):
            a(f"v_cvt_pk_bf16_f32 v{X+4*b+e//2}, v{Fx+8*b+e}, v{Fx+8*b+e+1}")
    a(f"v_lshlrev_b32 v2, 4, v{vL}\nv_add_u32 v2, {L_XN}, v2")
    a(f"ds_write_b128 v2, v[{X}:{X+3}]\nds_write_b128 v2, v[{X+4}:{X+7}] offset:1024")
    a(f"""
    v_and_b32 v3, 1, v{vL}
    v_lshlrev_b32 v3, 10, v3
    v_lshrrev_b32 v4, 4, v{vL}
    v_lshl_add_u32 v3, v4, 3, v3
    s_and_b32 s76, s2, 3
    s_lshl_b32 s76, s76, 8
    s_add_u32 s76, s76, {L_XN}
    v_add_u32 v3, s76, v3
    s_waitcnt lgkmcnt(0)
    """)
    for T in range(4):
        a(f"ds_read2_b64 v[{XA+4*T}:{XA+4*T+3}], v3 offset0:{T*8} offset1:{T*8+4}")
    a(f"s_mul_i32 s{sT}, s{sT}, 0x9E3779B1\ns_add_u32 s{sT}, s{sT}, 0x7F4A7C15")
    a(f"v_mov_b32 v{VT}, s{sT}\ns_and_b32 s{sT8}, s{sT}, 0xff")
    BT = 128
    DQ = 96
    def tile_gemv():
        seq = [(T, ct) for T in range(4) for ct in range(4)]
        def rd(i):
            T, ct = seq[i]
            B = BT + 4 * i
            a(f"ds_read_b64_tr_b16 v[{B}:{B+1}], v{TA+ct} offset:{T*4096}\nds_read_b64_tr_b16 v[{B+2}:{B+3}], v{TA+ct} offset:{T*4096+2048}")
        for i in range(7): rd(i)
        for i in range(16):
            T, ct = seq[i]
            B = BT + 4 * i
            a(f"s_waitcnt lgkmcnt({2 * (min(i + 6, 15) - i)})")
            D = DQ + 4 * ct
            C = "0" if T == 0 else f"v[{D}:{D+3}]"
            a(f"v_mfma_f32_16x16x32_bf16 v[{D}:{D+3}], v[{XA+4*T}:{XA+4*T+3}], v[{B}:{B+3}], {C}")
            if i + 7 < 16: rd(i + 7)
        for b in range(2):
            a(f"v_permlane16_swap_b32 v{DQ+b}, v{DQ+4+b}\nv_permlane16_swap_b32 v{DQ+8+b}, v{DQ+12+b}")
        for b in range(2):
            a(f"v_permlane32_swap_b32 v{DQ+b}, v{DQ+8+b}")
        for b in range(2):
            a(f"v_bfi_b32 v{4+b}, s{sMk}, v{VT}, v{DQ+b}")
    a(f"""
    s_lshl_b32 s76, s2, 8
    s_add_u32 s76, s76, {WS_QP}
    v_lshlrev_b32 v8, 2, v{vL}
    v_add_u32 v8, s76, v8
    s_mov_b32 s77, 65536
    s_waitcnt lgkmcnt(0)
    """)
    n = stamp(a, cfg, 1, sDiag, 6); vm.issue("st", n)
    a("s_barrier")
    tile_gemv()
    a(f"buffer_store_dword v4, v8, s[{SWS}:{SWS+3}], 0 offen sc1\nbuffer_store_dword v5, v8, s[{SWS}:{SWS+3}], s77 offen sc1")
    vm.issue("qst", 2)
    n = stamp(a, cfg, 2, sDiag, 6); vm.issue("st", n)
    a(f"""
    s_lshl_b32 s76, s{sGrp}, 13
    s_add_u32 s76, s76, {WS_QP}
    v_lshlrev_b32 v8, 4, v{vL}
    v_add_u32 v8, s76, v8
    s_mov_b32 s80, 0x05040100
    s_mov_b32 s81, 0x07060302
    s_mov_b32 s78, 4096
    v_mov_b32 v10, {L_TG}
    ds_write_b32 v10, v{VT}
    v_lshrrev_b32 v9, 4, v{vL}
    v_lshlrev_b32 v9, 8, v9
    v_and_b32 v10, 15, v{vL}
    v_lshl_add_u32 v9, v10, 3, v9
    v_add_u32 v9, {L_QL}, v9
    """)
    QD = 128
    loads = [f"buffer_load_dwordx4 v[{QD+4*i}:{QD+4*i+3}], v8, s[{SWS}:{SWS+3}], {'0' if i < 4 else 's78'} offen offset:{(i&3)*1024} sc1" for i in range(8)]
    poll(a, cfg, "L_poll_q", loads, list(range(QD, QD + 32)), sT8, 32, cfg.SL_Q, vm, presleep=cfg.PRE_Q)
    for i in range(4):
        for c in range(4): a(f"v_permlane32_swap_b32 v{QD+4*i+c}, v{QD+4*(i+4)+c}")
    for i in range(4):
        for c in range(0, 4, 2): a(f"v_pk_add_f32 v[{QD+4*i+c}:{QD+4*i+c+1}], v[{QD+4*i+c}:{QD+4*i+c+1}], v[{QD+4*(i+4)+c}:{QD+4*(i+4)+c+1}]")
    for i in range(2):
        for c in range(4): a(f"v_permlane16_swap_b32 v{QD+4*i+c}, v{QD+4*(i+2)+c}")
    for i in range(2):
        for c in range(0, 4, 2): a(f"v_pk_add_f32 v[{QD+4*i+c}:{QD+4*i+c+1}], v[{QD+4*i+c}:{QD+4*i+c+1}], v[{QD+4*(i+2)+c}:{QD+4*(i+2)+c+1}]")
    for i in range(2):
        a(f"v_cvt_pk_bf16_f32 v{16+2*i}, v{QD+4*i}, v{QD+4*i+1}\nv_cvt_pk_bf16_f32 v{17+2*i}, v{QD+4*i+2}, v{QD+4*i+3}")
    a(f"ds_write_b64 v9, v[16:17]\nds_write_b64 v9, v[18:19] offset:128")
    a("s_waitcnt lgkmcnt(0)\ns_barrier")
    n = stamp(a, cfg, 3, sDiag, 6); vm.issue("st", n)
    if cfg.SKIP_FFN: a("s_branch L_no_h")
    a(f"s_cmp_ge_u32 s2, 128\ns_cbranch_scc1 L_ffn_b\ns_cmp_ge_u32 s2, 112\ns_cbranch_scc1 L_no_h")
    tile_voff(a, 5, 3, 4, vL, stride=3584)
    a(f"""
    s_lshr_b32 s75, s2, 2
    s_lshl_b32 s75, s75, 7
    s_and_b32 s76, s2, 3
    s_mul_i32 s76, s76, {128*3584}
    s_add_u32 s75, s75, s76
    v_add_u32 v5, s75, v5
    """)
    for n in range(16):
        a(f"s_mov_b32 m0, {L_WT + n*1024}\ns_mov_b32 s77, {n*8*3584}")
        a(f"buffer_load_dwordx4 v5, s[{SW1}:{SW1+3}], s77 offen{cfg.QNT} lds")
    a(f"""
    s_lshl_b32 s76, s2, 9
    s_add_u32 s76, s76, {WS_HP}
    v_lshlrev_b32 v8, 2, v{vL}
    v_add_u32 v8, s76, v8
    s_waitcnt vmcnt(0)
    """)
    tile_gemv()
    a(f"buffer_store_dword v4, v8, s[{SWS}:{SWS+3}], 0 offen sc1\nbuffer_store_dword v5, v8, s[{SWS}:{SWS+3}], 0 offen offset:256 sc1")
    a(f"""
    s_branch L_no_h
    L_ffn_b:
    s_sub_u32 s75, s2, 128
    s_cmp_ge_u32 s75, 112
    s_cbranch_scc1 L_no_h
    s_lshl_b32 s76, s75, 14
    v_lshlrev_b32 v9, 4, v{vL}
    v_add_u32 v9, s76, v9
    """)
    W2 = 192
    for r in range(16):
        a(f"s_mov_b32 s77, {r*1024}")
        a(f"buffer_load_dwordx4 v[{W2+4*r}:{W2+4*r+3}], v9, s[{SW2}:{SW2+3}], s77 offen{cfg.WNT}")
    a(f"""
    v_and_b32 v3, 7, v{vL}
    s_lshl_b32 s76, s75, 5
    v_lshl_add_u32 v4, v3, 2, s76
    buffer_load_dword v14, v4, s[{SB1}:{SB1+3}], 0 offen
    s_lshr_b32 s76, s75, 2
    s_lshl_b32 s76, s76, 11
    s_and_b32 s77, s75, 3
    s_lshl_b32 s77, s77, 6
    s_add_u32 s76, s76, s77
    s_add_u32 s76, s76, {WS_HP}
    v_lshrrev_b32 v4, 4, v{vL}
    v_lshlrev_b32 v4, 9, v4
    v_bfe_u32 v5, v{vL}, 3, 1
    v_lshl_add_u32 v4, v5, 8, v4
    v_lshl_add_u32 v8, v3, 3, v4
    v_add_u32 v8, s76, v8
    s_waitcnt vmcnt(0)
    """)
    W2P = 64
    for j in range(8):
        A_ = W2 + 8 * j; B_ = A_ + 4
        for k4 in range(4):
            o = W2P + j * 8 + 2 * k4
            a(f"v_perm_b32 v{o}, v{B_+k4}, v{A_+k4}, s80\nv_perm_b32 v{o+1}, v{B_+k4}, v{A_+k4}, s81")
    poll(a, cfg, "L_poll_h", [f"buffer_load_dwordx2 v[4:5], v8, s[{SWS}:{SWS+3}], 0 offen sc1"], [4, 5], sT8, 32, cfg.SL_H, vm)
    allreduce_cross(a, "v_add_f32", [4, 5], [6, 7])
    a(f"""
    v_cvt_pk_bf16_f32 v10, v4, v5
    v_lshlrev_b32 v6, 16, v14
    v_and_b32 v7, 0xffff0000, v14
    v_lshlrev_b32 v4, 16, v10
    v_and_b32 v5, 0xffff0000, v10
    v_add_f32 v4, v4, v6
    v_add_f32 v5, v5, v7
    v_cvt_pk_bf16_f32 v10, v4, v5
    v_lshlrev_b32 v4, 16, v10
    v_and_b32 v5, 0xffff0000, v10
    """)
    k = 2 * math.sqrt(2 / math.pi) * math.log2(math.e)
    a(f"s_mov_b32 s78, 0x{fb(0.044715):x}\ns_mov_b32 s79, 0x{fb(-k):x}")
    for r in (4, 5):
        t = 16 + (r - 4) * 2
        a(f"v_mul_f32 v{t}, v{r}, v{r}\nv_fma_f32 v{t}, v{t}, s78, 1.0\nv_mul_f32 v{t}, v{t}, v{r}\nv_mul_f32 v{t}, s79, v{t}")
        a(f"v_exp_f32 v{t}, v{t}\nv_add_f32 v{t}, 1.0, v{t}\nv_rcp_f32 v{t}, v{t}\nv_mul_f32 v{r}, v{r}, v{t}")
    a("v_cvt_pk_bf16_f32 v10, v4, v5")
    YA = 16
    for j in range(8):
        for b in range(2):
            a(f"v_readlane_b32 s{82+b}, v10, {8*b+j}")
        for b in range(2):
            for cc in range(8):
                C = "0" if j == 0 else f"v{YA+8*b+cc}"
                a(f"v_dot2_f32_bf16 v{YA+8*b+cc}, s{82+b}, v{W2P+8*j+cc}, {C}")
    a(f"v_lshlrev_b32 v2, 5, v{vL}\nv_add_u32 v2, {L_WT}, v2")
    for b in range(2):
        a(f"ds_write_b128 v2, v[{YA+8*b}:{YA+8*b+3}] offset:{b*2048}\nds_write_b128 v2, v[{YA+8*b+4}:{YA+8*b+7}] offset:{b*2048+16}")
    a(f"""
    v_lshlrev_b32 v2, 4, v{vL}
    s_lshl_b32 s76, s75, 12
    s_add_u32 s76, s76, {WS_YP}
    v_add_u32 v3, s76, v2
    v_add_u32 v2, {L_WT}, v2
    s_waitcnt lgkmcnt(0)
    """)
    YR = 32
    for q in range(4):
        a(f"ds_read_b128 v[{YR+4*q}:{YR+4*q+3}], v2 offset:{q*1024}")
    a("s_waitcnt lgkmcnt(0)")
    for q in range(4):
        for c in range(4): a(f"v_bfi_b32 v{YR+4*q+c}, s{sMk}, v{VT}, v{YR+4*q+c}")
        a(f"buffer_store_dwordx4 v[{YR+4*q}:{YR+4*q+3}], v3, s[{SWS}:{SWS+3}], 0 offen offset:{q*1024} sc1")
    a("L_no_h:")
    a("s_nop 4")
    n = stamp(a, cfg, 9, sDiag, 6)
    vm.q = []
    YD = 64
    yloads = [f"v_and_b32 v{YD+6}, 0xff, v{VT}", f"v_and_b32 v{YD+7}, 0xff, v{VT}",
              f"buffer_load_dwordx2 v[{YD}:{YD+1}], v62, s[{SWS}:{SWS+3}], 0 offen sc1",
              f"buffer_load_dwordx2 v[{YD+2}:{YD+3}], v62, s[{SWS}:{SWS+3}], s86 offen sc1",
              f"buffer_load_dwordx2 v[{YD+4}:{YD+5}], v62, s[{SWS}:{SWS+3}], s87 offen sc1",
              "s_mov_b32 exec_hi, 0",
              f"buffer_load_dwordx2 v[{YD+6}:{YD+7}], v62, s[{SWS}:{SWS+3}], s88 offen sc1",
              "s_mov_b32 exec_hi, -1"]
    def y_prep():
        a(f"""
    v_lshlrev_b32 v9, 2, v{vL}
    s_lshl_b32 s76, s{sC0}, 1
    v_add_u32 v9, s76, v9
    buffer_load_dword v20, v9, s[{SB2}:{SB2+3}], 0 offen
    s_lshl_b32 s76, s{sBf}, 10
    v_add_u32 v21, s76, v9
    buffer_load_dword v22, v21, s[{SX}:{SX+3}], 0 offen
    buffer_load_dword v23, v21, s[{SOUT}:{SOUT+3}], 0 offen
    s_lshl_b32 s76, s{sBf}, 11
    s_lshl_b32 s77, s{sC0}, 2
    s_add_u32 s76, s76, s77
    s_add_u32 s76, s76, {WS_YP}
    v_lshrrev_b32 v62, 1, v{vL}
    v_lshlrev_b32 v62, 12, v62
    v_and_b32 v9, 1, v{vL}
    v_lshl_add_u32 v62, v9, 3, v62
    v_add_u32 v62, s76, v62
    s_mov_b32 s86, {32*4096}
    s_mov_b32 s87, {64*4096}
    s_mov_b32 s88, {96*4096}
    s_waitcnt vmcnt(0)
    v_and_b32 v23, 0xffff0000, v22
    v_lshlrev_b32 v22, 16, v22
    """)
    def y_issue():
        for l in yloads: a(l)
    def y_finish():
        tags = list(range(YD, YD + 8))
        a("s_waitcnt vmcnt(0)")
        tagcheck(a, tags, sT8, 56, False)
        a("s_cbranch_vccz L_y_ok")
        poll(a, cfg, "L_poll_y", yloads, tags, sT8, 56, cfg.SL_Y, vm)
        a("L_y_ok:\ns_nop 4")
        a(f"""
    v_pk_add_f32 v[{YD}:{YD+1}], v[{YD}:{YD+1}], v[{YD+2}:{YD+3}]
    v_pk_add_f32 v[{YD+4}:{YD+5}], v[{YD+4}:{YD+5}], v[{YD+6}:{YD+7}]
    v_pk_add_f32 v[4:5], v[{YD}:{YD+1}], v[{YD+4}:{YD+5}]
    """)
        dpp_red(a, "v_add_f32", [4, 5], (2, 4, 8)); allreduce_cross(a, "v_add_f32", [4, 5], [6, 7])
        a(f"""
    v_cvt_pk_bf16_f32 v4, v4, v5
    v_lshlrev_b32 v6, 16, v20
    v_and_b32 v7, 0xffff0000, v20
    v_and_b32 v5, 0xffff0000, v4
    v_lshlrev_b32 v4, 16, v4
    v_add_f32 v4, v4, v6
    v_add_f32 v5, v5, v7
    v_cvt_pk_bf16_f32 v4, v4, v5
    v_and_b32 v5, 0xffff0000, v4
    v_lshlrev_b32 v4, 16, v4
    v_mul_f32 v6, 0x{fb(-math.log2(math.e)):x}, v4
    v_mul_f32 v7, 0x{fb(-math.log2(math.e)):x}, v5
    v_exp_f32 v6, v6
    v_exp_f32 v7, v7
    v_add_f32 v6, 1.0, v6
    v_add_f32 v7, 1.0, v7
    v_rcp_f32 v6, v6
    v_rcp_f32 v7, v7
    v_mul_f32 v4, v4, v6
    v_mul_f32 v5, v5, v7
    v_cvt_pk_bf16_f32 v4, v4, v5
    v_lshlrev_b32 v24, 16, v4
    v_and_b32 v25, 0xffff0000, v4
    """)
    a("s_barrier")
    a(f"""
    v_and_b32 v3, 15, v{vL}
    v_lshlrev_b32 v3, 3, v3
    v_add_u32 v3, {L_ST}, v3
    ds_read_b64 v[4:5], v3
    s_waitcnt lgkmcnt(0)
    v_mov_b32 v6, v4
    """)
    dpp_red(a, "v_max_f32", [6], (4, 8))
    a("v_sub_f32 v7, v4, v6\nv_exp_f32 v7, v7\nv_mul_f32 v7, v7, v5")
    dpp_red(a, "v_add_f32", [7], (4, 8))
    a(f"""
    s_lshl_b32 s76, s{sGrp}, 10
    s_add_u32 s76, s76, {WS_SG}
    s_lshl_b32 s77, s{sSp}, 6
    s_add_u32 s77, s77, s76
    v_lshlrev_b32 v8, 4, v{vL}
    v_add_u32 v9, s77, v8
    v_add_u32 v8, s76, v8
    v_mov_b32 v12, v6
    v_mov_b32 v13, s{sT}
    v_mov_b32 v14, v7
    v_mov_b32 v15, s{sT}
    s_mov_b64 exec, 15
    buffer_store_dwordx4 v[12:15], v9, s[{SWS}:{SWS+3}], 0 offen sc1
    s_mov_b64 exec, -1
    """)
    n = stamp(a, cfg, 10, sDiag, 6)
    poll(a, cfg, "L_poll_s", [f"buffer_load_dwordx4 v[16:19], v8, s[{SWS}:{SWS+3}], 0 offen sc1"], [17, 19], sT, 32, cfg.SL_S, vm, full=True)
    n = stamp(a, cfg, 11, sDiag, 20)
    a("v_mov_b32 v10, v16")
    dpp_red(a, "v_max_f32", [10], (4, 8))
    allreduce_cross(a, "v_max_f32", [10], [11])
    a("v_sub_f32 v11, v16, v10\nv_exp_f32 v11, v11\nv_mul_f32 v11, v11, v18")
    dpp_red(a, "v_add_f32", [11], (4, 8))
    allreduce_cross(a, "v_add_f32", [11], [12])
    a(f"""
    v_rcp_f32 v12, v11
    v_sub_f32 v13, v4, v10
    v_exp_f32 v13, v13
    v_fma_f32 v14, -v11, v12, 1.0
    v_fma_f32 v12, v14, v12, v12
    v_mul_f32 v13, v13, v12
    v_lshlrev_b32 v3, 2, v{vL}
    v_add_u32 v3, {L_F}, v3
    s_mov_b64 exec, 0xffff
    ds_write_b32 v3, v13
    s_mov_b64 exec, -1
    """)
    y_prep()
    n = stamp(a, cfg, 4, sDiag, 6)
    a("s_waitcnt lgkmcnt(0)\ns_barrier")
    n = stamp(a, cfg, 5, sDiag, 6)
    a(f"""
    s_lshl_b32 s76, s{sGrp}, 15
    s_lshl_b32 s77, s{sSp}, 11
    s_add_u32 s76, s76, s77
    s_add_u32 s76, s76, {WS_MB1}
    v_lshlrev_b32 v8, 4, v{vL}
    v_add_u32 v8, s76, v8
    v_lshrrev_b32 v9, 5, v{vL}
    v_lshlrev_b32 v9, 5, v9
    v_and_b32 v10, 7, v{vL}
    v_lshl_add_u32 v9, v10, 2, v9
    v_add_u32 v9, {L_OPR}, v9
    v_lshlrev_b32 v3, 3, v{vL}
    v_and_b32 v3, 15, v3
    v_add_u32 v3, {L_RED}, v3
    s_barrier
    """)
    if not cfg.SKIP_FFN: y_issue()
    MD = 32
    loads = [f"buffer_load_dwordx4 v[{MD+4*i}:{MD+4*i+3}], v8, s[{SWS}:{SWS+3}], 0 offen offset:{i*1024} sc1" for i in range(2)]
    poll(a, cfg, "L_poll_m", loads, list(range(MD, MD + 8)), sT8, 48, cfg.SL_M, vm, presleep=cfg.PRE_M)
    n = stamp(a, cfg, 6, sDiag, 6)
    a(f"""
    v_pk_add_f32 v[{MD}:{MD+1}], v[{MD}:{MD+1}], v[{MD+4}:{MD+5}]
    v_pk_add_f32 v[{MD+2}:{MD+3}], v[{MD+2}:{MD+3}], v[{MD+6}:{MD+7}]
    v_permlane32_swap_b32 v{MD}, v{MD+2}
    v_permlane32_swap_b32 v{MD+1}, v{MD+3}
    v_add_f32 v28, v{MD}, v{MD+2}
    v_add_f32 v29, v{MD+1}, v{MD+3}
    """)
    allreduce_cross(a, "v_add_f32", [28, 29], [26, 27], which=(16,))
    dpp_red(a, "v_add_f32", [28, 29], (8,))
    a(f"""
    v_cvt_pk_bf16_f32 v30, v28, v29
    s_mov_b32 exec_lo, 0xff
    s_mov_b32 exec_hi, 0xff
    ds_write_b32 v9, v30
    s_mov_b64 exec, -1
    s_waitcnt lgkmcnt(0)
    s_barrier
    """)
    n = stamp(a, cfg, 7, sDiag, 6)
    a("s_barrier")
    if not cfg.SKIP_FFN: y_finish()
    n = stamp(a, cfg, 12, sDiag, 6)
    a("s_barrier")
    a(f"""
    ds_read_b64 v[4:5], v3
    ds_read_b64 v[6:7], v3 offset:16
    ds_read_b64 v[8:9], v3 offset:32
    ds_read_b64 v[10:11], v3 offset:48
    s_waitcnt lgkmcnt(0)
    v_pk_add_f32 v[4:5], v[4:5], v[6:7]
    v_pk_add_f32 v[8:9], v[8:9], v[10:11]
    v_pk_add_f32 v[4:5], v[4:5], v[8:9]
    v_cvt_pk_bf16_f32 v4, v4, v5
    v_and_b32 v5, 0xffff0000, v4
    v_lshlrev_b32 v4, 16, v4
    v_mul_f32 v4, v4, v24
    v_mul_f32 v5, v5, v25
    v_cvt_pk_bf16_f32 v4, v4, v5
    v_and_b32 v5, 0xffff0000, v4
    v_lshlrev_b32 v4, 16, v4
    v_add_f32 v4, v4, v22
    v_add_f32 v5, v5, v23
    v_cvt_pk_bf16_f32 v4, v4, v5
    s_mov_b64 exec, 3
    buffer_store_dword v4, v21, s[{SOUT}:{SOUT+3}], 0 offen
    s_mov_b64 exec, -1
    """)
    a(f"""
    s_cmp_lg_u32 s2, 0
    s_cbranch_scc1 L_h_end
    v_mov_b32 v4, s{sT}
    v_mov_b32 v5, {WS_EPOCH}
    s_mov_b64 exec, 1
    buffer_store_dword v4, v5, s[{SWS}:{SWS+3}], 0 offen
    L_h_end:
    """)
    n = stamp(a, cfg, 8, sDiag, 6)
    if cfg.DIAG: a("s_waitcnt vmcnt(0)")
    a("s_endpgm")

def generate(cfg):
    a = Asm()
    a(f"""
    s_cmp_ge_u32 s2, 256
    s_cbranch_scc1 L_exit
    s_load_dwordx16 s[4:19], s[0:1], 0
    s_load_dwordx8 s[20:27], s[0:1], 64
    s_load_dwordx2 s[28:29], s[0:1], 96
    v_lshrrev_b32 v2, 6, v0
    v_and_b32 v1, 63, v0
    v_readfirstlane_b32 s3, v2
    s_cmp_eq_u32 s3, 4
    s_cbranch_scc1 L_helper
    """)
    gen_stream(a, cfg)
    a("L_helper:")
    gen_helper(a, cfg)
    a("L_exit:\ns_endpgm")
    body, added = a.finish()
    ref = open("cdna_kernels/" + NAME + ".s.ref").read()
    head = ref.split("; Override launch geometry")[0]
    if cfg.DIAG: head += "; DIAGBUILD\n"
    txt = head + f"; @launch grid=(256,1,1) block=(320,1,1) lds={LDS_SIZE}\n"
    txt += f""".amdgcn_target "amdgcn-amd-amdhsa--gfx950"
.text
.globl {NAME}_kernel
.p2align 8
.type {NAME}_kernel,@function
{NAME}_kernel:
"""
    txt += body
    txt += f""".section .rodata,"a"
.p2align 6
.amdhsa_kernel {NAME}_kernel
  .amdhsa_next_free_vgpr 256
  .amdhsa_next_free_sgpr 96
  .amdhsa_accum_offset 256
  .amdhsa_group_segment_fixed_size 0
  .amdhsa_kernarg_size 104
  .amdhsa_user_sgpr_count 2
  .amdhsa_user_sgpr_kernarg_segment_ptr 1
  .amdhsa_system_sgpr_workgroup_id_x 1
.end_amdhsa_kernel
"""
    return txt, added
if __name__ == "__main__":
    kw = eval("dict(" + (sys.argv[2] if len(sys.argv) > 2 else "") + ")")
    txt, added = generate(Cfg(**kw))
    out = sys.argv[1] if len(sys.argv) > 1 else "cdna_kernels/" + NAME + ".s"
    open(out, "w").write(txt)
    print("wrote", out, len(txt), "bytes; nops added", added)
```
